```python
import torch

def _softmax(x, axis=-1):
    return torch.softmax(x, dim=axis)
def _gelu(x):
    return torch.nn.functional.gelu(x, approximate="tanh")
def _silu(x):
    return torch.nn.functional.silu(x)
def _sigmoid(x):
    return torch.sigmoid(x)
def _layernorm(x, axis=-1, eps=1e-5):
    m = x.mean(dim=axis, keepdim=True)
    v = x.var(dim=axis, keepdim=True, unbiased=False)
    return (x - m) / torch.sqrt(v + eps)
def _scatter_add(tgt, idx, src, axis=0):
    return tgt.clone().index_add_(axis, idx, src)
def _segment_sum(src, seg, n):
    out = torch.zeros((n,) + src.shape[1:], dtype=src.dtype)
    return out.index_add_(0, seg, src)
def _pad(x, pw):
    flat = tuple(v for pair in reversed(pw) for v in pair)
    return torch.nn.functional.pad(x, flat)

kernel_name = 'gated_mix__spectral_gfnet__dense_activation_silu__prompt'

def setup_inputs():

    _w = (lambda a: (lambda t: t.to(torch.bfloat16) if t.is_floating_point() else t)(torch.as_tensor(a)))
    def _A_setup():
        B, S, D = 1, 2048, 576
        Df = D // 2 + 1
        return {
            "x": _w((lambda *s: torch.randn(*s, dtype=torch.bfloat16) * 0.05)(B, S, D)),
            "w_r": _w((lambda *s: torch.randn(*s, dtype=torch.bfloat16) * 0.4)(S, Df) * 0.02),
            "w_i": _w((lambda *s: torch.randn(*s, dtype=torch.bfloat16) * 0.4)(S, Df) * 0.02),
        }
    _A_in = _A_setup()

    def _B_setup():
        B, S, D, F = 1, 2048, 576, 4608
        return {
            "x": _w((lambda *s: torch.randn(*s, dtype=torch.bfloat16) * 0.05)(B, S, D)),
            "w1": _w((lambda *s: torch.randn(*s, dtype=torch.bfloat16) * 3.2)(D, F) * (D ** -0.5)),
            "w2": _w((lambda *s: torch.randn(*s, dtype=torch.bfloat16) * 0.05)(F, D) * (F ** -0.5)),
        }
    _B_in = _B_setup()

    return {
        "A_x": _A_in["x"],
        "A_w_r": _A_in["w_r"],
        "A_w_i": _A_in["w_i"],
        "B_x": _B_in["x"],
        "B_w1": _B_in["w1"],
        "B_w2": _B_in["w2"],
        "gate_w": _w((lambda *s: torch.randn(*s, dtype=torch.bfloat16) * 0.05)(576) * 16.0),
    }

def reference(A_x, A_w_r, A_w_i, B_x, B_w1, B_w2, gate_w):
    def _A_ref(x, w_r, w_i):
        B, S, D = x.shape
        X = (lambda x, axes=(-2,-1): torch.fft.rfft2(x.float(), dim=axes))(x, axes=(-2, -1))
        W = w_r + 1j * w_i
        X = X * W
        y = (lambda x, s, axes=(-2,-1): torch.fft.irfft2(x, s=s, dim=axes).to(torch.bfloat16))(X, (S, D), axes=(-2, -1))
        return y

    def _B_ref(x, w1, w2):
        h = torch.einsum("bsd,df->bsf", x, w1)
        h = _silu(h)
        out = torch.einsum("bsf,fd->bsd", h, w2)
        return out

    x = A_x
    g = _sigmoid((x * gate_w).sum(-1, keepdims=True))
    a = _A_ref(x, A_w_r, A_w_i)
    b = _B_ref(x, B_w1, B_w2)
    return g * a + (1 - g) * b
```

```python
import numpy as np
from em import Em
NAME="gated_mix__spectral_gfnet__dense_activation_silu__prompt"
H_OFF   = 0;                 H_SZ  = 64*144*2048
U_OFF   = 0x1400000;         U_SZ  = 576*4096
WT_OFF  = 0x1700000;         WT_SZ = 289*8192
G_OFF   = 0x1A00000;         G_SZ  = 2048*4
ZT_OFF  = 0x1B00000;         ZT_SZ = 576*4096
P_OFF   = 0x1E00000;         P_SZ  = 4*64*18*2048
assert H_OFF+H_SZ<=U_OFF and U_OFF+U_SZ<=WT_OFF and WT_OFF+WT_SZ<=G_OFF
def bf16bits(x):
    u=int(np.float32(x).view(np.uint32)); return ((u+0x7fff+((u>>16)&1))>>16)&0xffff
def f32bits(x): return int(np.float32(x).view(np.uint32))
def srd(e, d, base, size, off=0):
    if off:
        e(f"s_add_u32 s{d}, s{base}, {hex(off)}\ns_addc_u32 s{d+1}, s{base+1}, 0")
    else:
        e(f"s_mov_b32 s{d}, s{base}\ns_mov_b32 s{d+1}, s{base+1}")
    e(f"s_mov_b32 s{d+2}, {hex(size)}\ns_mov_b32 s{d+3}, 0x20000")
def pcptr(e, d, sym, uniq):
    e(f"s_getpc_b64 s[{d}:{d+1}]")
    e(f"s_add_u32 s{d}, s{d}, {sym}@rel32@lo+4\ns_addc_u32 s{d+1}, s{d+1}, {sym}@rel32@hi+12")
def spread(n_items, lo, hi):
    return [lo + (j*(hi-lo))//n_items for j in range(n_items)]
def kdesc(name, vgpr=256, sgpr=96, acc=None):
    return f""".amdhsa_kernel {name}
  .amdhsa_next_free_vgpr {vgpr}
  .amdhsa_next_free_sgpr {sgpr}
  .amdhsa_accum_offset {acc or vgpr}
  .amdhsa_group_segment_fixed_size 0
  .amdhsa_kernarg_size 80
  .amdhsa_user_sgpr_count 2
  .amdhsa_user_sgpr_kernarg_segment_ptr 1
  .amdhsa_system_sgpr_workgroup_id_x 1
.end_amdhsa_kernel"""
```

```python
import re
TRANS = ("v_exp_f32","v_log_f32","v_rcp_f32","v_rsq_f32","v_sqrt_f32","v_sin_f32","v_cos_f32")
def regs_of(tok):
    tok = tok.strip()
    tok = tok.lstrip('-')
    if tok.startswith('|'): tok = tok.strip('|')
    m = re.fullmatch(r'([vsa])\[(\d+):(\d+)\]', tok)
    if m: return [(m.group(1), i) for i in range(int(m.group(2)), int(m.group(3))+1)]
    m = re.fullmatch(r'([vsa])(\d+)', tok)
    if m: return [(m.group(1), int(m.group(2)))]
    if tok == 'vcc': return [('s','vcc')]
    if tok == 'exec': return [('s','exec')]
    if tok == 'm0': return [('s','m0')]
    return []
class Ins:
    __slots__=('text','op','dst','src','cls','passes','srcC','stdata','nws')
def parse(text):
    I = Ins(); I.text = text
    t = text.split(';')[0].strip()
    sp = t.split(None,1); op = sp[0]; I.op = op
    rest = sp[1] if len(sp)>1 else ''
    toks = [x.strip() for x in rest.split(',')]
    mods = ''
    if toks and toks[-1]:
        l = toks[-1].split(None,1); toks[-1] = l[0]; mods = l[1] if len(l)>1 else ''
    ops = [regs_of(x) for x in toks]
    I.dst=[]; I.src=[]; I.cls='other'; I.passes=0; I.srcC=[]; I.stdata=[]; I.nws=1
    flat = lambda L: [r for x in L for r in x]
    if op.startswith('v_mfma'):
        I.cls='mfma'; I.dst=ops[0]; I.src=flat(ops[1:]); I.srcC=ops[3]
        I.passes = 8 if '32x32x16' in op else 4
    elif op.startswith('v_'):
        I.cls='valu'
        if op.startswith('v_permlane') and 'swap' in op:
            I.dst=flat(ops); I.src=flat(ops); I.cls='valu'
        else:
            I.dst=ops[0]; I.src=flat(ops[1:])
            if op.startswith(('v_fmac','v_dot2c','v_mac')): I.src+=ops[0]
            if op.startswith('v_cndmask') and len(ops)==3: I.src+=[('s','vcc')]
            if op.startswith('v_cmpx'): I.dst=[('s','exec')]; I.src=flat(ops)
    elif op.startswith('buffer_load') or op.startswith('global_load'):
        if ' lds' in (' '+mods) :
            I.cls='dma'; I.src=flat(ops)+[('s','m0')]
        else:
            I.cls='vload'; I.dst=ops[0]; I.src=flat(ops[1:])
    elif op.startswith('buffer_store') or op.startswith('global_store'):
        I.cls='vstore'; I.src=flat(ops)
        if 'x4' in op or 'x3' in op: I.stdata = ops[0] if op.startswith('buffer') else ops[1]
    elif op.startswith('buffer_atomic') or op.startswith('global_atomic'):
        I.cls='vload' if ('sc0' in mods) else 'vstore'
        I.src=flat(ops)
        if I.cls=='vload': I.dst=ops[0]
    elif op.startswith('buffer_'):
        I.cls='vstore'
    elif op.startswith('ds_read') or op.startswith('ds_bpermute') :
        I.cls='dsread'; I.dst=ops[0]; I.src=flat(ops[1:])
    elif op.startswith('ds_'):
        I.cls='dswrite'; I.src=flat(ops)
    elif op.startswith('s_load') or op in('s_memtime','s_memrealtime') or op.startswith('s_atomic'):
        I.cls='smem'; I.dst=ops[0]; I.src=flat(ops[1:])
    elif op=='s_nop':
        I.cls='nop'; I.nws=int(toks[0])+1
    elif op in ('s_waitcnt','s_barrier','s_setprio','s_endpgm','s_branch','s_sleep') or op.startswith('s_cbranch'):
        I.cls='ctl'
    elif op.startswith('s_cmp') or op.startswith('s_bitcmp'):
        I.cls='salu'; I.src=flat(ops)
    elif op.startswith('s_'):
        I.cls='salu'; I.dst=ops[0]; I.src=flat(ops[1:])
        if 'saveexec' in op: I.dst=I.dst+[('s','exec')]
    else:
        raise Exception("unknown op "+text)
    if 'dpp' in op or 'quad_perm' in mods or 'row_' in mods: I.cls='valu'; I.op=op+('' if op.endswith('dpp') else '_dpp')
    return I
class Em:
    def __init__(s):
        s.out=[]; s.hist=[]
        s.lg=[]
        s.vm=[]
        s.nnop=0; s.nins=0
    def raw(s, text): s.out.append(text)
    def label(s, name): s.out.append(name+':')
    def comment(s, t): s.out.append('; '+t)
    def _push(s, I):
        s.out.append('    '+I.text); s.hist.append(I); s.nins+=1
        if len(s.hist)>40: s.hist=s.hist[-40:]
    def _wait(s, vm=None, lg=None):
        parts=[]
        if vm is not None:
            vm=min(vm,63); parts.append(f'vmcnt({vm})'); s.vm=s.vm[len(s.vm)-vm:] if vm>0 else []
        if lg is not None:
            lg=min(lg,15); parts.append(f'lgkmcnt({lg})'); s.lg=s.lg[len(s.lg)-lg:] if lg>0 else []
        s._push(parse('s_waitcnt '+' '.join(parts)))
    def wait_vm_tag(s, tag):
        idx=[i for i,(d,t) in enumerate(s.vm) if t==tag]
        if not idx: return
        s._wait(vm=len(s.vm)-1-idx[-1])
    def wait_lg_tag(s, tag):
        idx=[i for i,(d,t,sm) in enumerate(s.lg) if t==tag]
        if not idx: return
        if any(sm for (d,t,sm) in s.lg): s._wait(lg=0)
        else: s._wait(lg=len(s.lg)-1-idx[-1])
    def wait_all(s, vm=True, lg=True):
        s._wait(vm=0 if vm else None, lg=0 if lg else None)
    def __call__(s, text, tag=None):
        for line in text.split('\n'):
            line=line.strip()
            if not line: continue
            if line.endswith(':'): s.label(line[:-1]); continue
            if line.startswith(';'): s.out.append(line); continue
            s.ins(line, tag)
    def ins(s, text, tag=None):
        I=parse(text)
        if I.op=='s_waitcnt':
            m=re.search(r'vmcnt\((\d+)\)',text); n=re.search(r'lgkmcnt\((\d+)\)',text)
            s._wait(vm=int(m.group(1)) if m else None, lg=int(n.group(1)) if n else None); return
        touched=set(I.src)|set(I.dst)
        wv=None; wl=None
        for i,(d,t) in enumerate(s.vm):
            if d & touched:
                if I.cls=='vload' and not (d & set(I.src)): continue
                wv=len(s.vm)-1-i
        for i,(d,t,sm) in enumerate(s.lg):
            if d & touched:
                if I.cls=='dsread' and not sm and not (d & set(I.src)): continue
                wl=len(s.lg)-1-i
        if wl is not None and any(sm for (d,t,sm) in s.lg): wl=0
        if wv is not None or wl is not None: s._wait(vm=wv, lg=wl)
        need=0; dist=0
        src=set(I.src); dst=set(I.dst)
        for P in reversed(s.hist):
            pd=set(P.dst); req=0
            if P.cls=='valu':
                vd={r for r in pd if r[0] in 'va'}; sd={r for r in pd if r[0]=='s'}
                if I.cls=='mfma' and vd&src: req=max(req,2)
                if I.cls=='mfma' and ('s','exec') in sd: req=max(req,4)
                if I.cls=='valu':
                    if P.op in TRANS and vd&src and I.op not in TRANS: req=max(req,1)
                    if P.op in TRANS and vd&src: req=max(req,1)
                    if I.op.endswith('_dpp') and vd&src: req=max(req,2)
                    if I.op.endswith('_dpp') and ('s','exec') in sd: req=max(req,5)
                    if I.op.startswith('v_permlane') and vd&src: req=max(req,2)
                    if I.op.startswith(('v_readfirstlane','v_readlane')) and vd&src: req=max(req,1)
                    if sd&src: req=max(req,2)
                    if 'sdwa' in P.op and vd&(src|dst): req=max(req,1)
                if I.cls in('vload','vstore','dma') and sd&src: req=max(req,5)
                if I.cls in('salu','smem') and sd&src: req=max(req,1)
            if P.cls=='mfma':
                n={8:12,4:8}[P.passes]
                if I.cls=='mfma':
                    AB=set(I.src)-set(I.srcC) if not (set(I.srcC)&(set(I.src)-set(I.srcC))) else set(I.src)
                    ab=set(regs_of(I.text.split(None,1)[1].split(',')[1]))|set(regs_of(I.text.split(None,1)[1].split(',')[2]))
                    if pd&ab: req=max(req,n)
                    if pd&set(I.srcC) and pd!=set(I.srcC): req=max(req,n-2)
                    if pd&dst and pd!=set(I.srcC): req=max(req,n)
                elif I.cls in('valu','vload','vstore','dma','dsread','dswrite'):
                    if pd&(src|dst): req=max(req,n)
                    if I.cls=='valu' and set(P.srcC)&dst: req=max(req,{8:7,4:3}[P.passes])
            if P.cls=='vstore' and P.stdata and set(P.stdata)&dst:
                req=max(req,2 if I.cls in('valu','mfma') else 1)
            if P.cls=='salu' and ('s','m0') in pd and I.cls=='dma': req=max(req,1)
            if req-dist>need: need=req-dist
            dist+=P.nws
            if dist>=20: break
        while need>0:
            k=min(need,16); s._push(parse(f's_nop {k-1}')); need-=k; s.nnop+=1
        s._push(I)
        if I.cls in('vload',): s.vm.append((set(I.dst),tag))
        elif I.cls in('vstore','dma'): s.vm.append((set(),tag))
        elif I.cls=='dsread': s.lg.append((set(I.dst),tag,False))
        elif I.cls=='dswrite': s.lg.append((set(),tag,False))
        elif I.cls=='smem': s.lg.append((set(I.dst),tag,True))
        assert len(s.vm)<=63 or True
    def fork(s):
        e=Em(); e.hist=list(s.hist); e.lg=list(s.lg); e.vm=list(s.vm); return e
    def text(s): return '\n'.join(s.out)
```

```python
from common import *
K1_LDS = 151552
WR=0; T3=49152; XR=86016; T4=XR; T5=12288
XF=112; ACC=48; FR=32
RA=3; NR=4
def gemm(e, mode, opt):
    st = 9216 if mode=='h' else 1152
    sc = opt.get('hsc','') if mode=='h' else opt.get('usc','')
    e("s_lshl_b32 s31, s29, 3\ns_add_u32 s31, s31, s28")
    e("s_mul_i32 s32, s31, 1152")
    for q in (1,2,3): e(f"s_add_u32 s{32+q}, s32, {q*8*64*1152}")
    e(f"s_lshl_b32 s36, s28, 13\ns_add_u32 s36, s36, {XR}")
    e("s_mul_i32 s43, s30, 384")
    e(f"s_and_b32 s41, s28, 1\ns_mul_i32 s37, s41, {32*st}\ns_lshr_b32 s42, s28, 1\ns_lshl_b32 s44, s42, 6\ns_add_u32 s37, s37, s44\ns_add_u32 s37, s37, s43")
    e(f"s_lshl_b32 s41, s41, 11\ns_lshl_b32 s38, s42, 12\ns_cmp_eq_u32 s42, 3\ns_cselect_b32 s38, {T3}, s38\ns_cselect_b32 s39, 1, 3\ns_cselect_b32 s40, 0, 49152\ns_lshl_b32 s39, s39, 12\ns_add_u32 s38, s38, s41")
    e("v_and_b32 v1, 63, v0")
    e("v_lshrrev_b32 v4, 3, v1\nv_and_b32 v5, 7, v1\nv_lshrrev_b32 v6, 1, v4\nv_xor_b32 v5, v5, v6\nv_lshlrev_b32 v5, 4, v5")
    e("s_mov_b32 s41, 73728\nv_mul_lo_u32 v4, v4, s41\nv_add_u32 v2, v4, v5\nv_xor_b32 v3, 64, v2")
    e(f"v_lshrrev_b32 v5, 2, v1\ns_mov_b32 s41, {st}\nv_mul_lo_u32 v5, v5, s41\nv_and_b32 v6, 3, v1\nv_lshlrev_b32 v6, 4, v6\nv_add_u32 v4, v5, v6")
    def group(c):
        L=[]
        def wd(eidx):
            def f():
                if eidx==0 and c>0:
                    e("s_add_u32 s38, s38, s39")
                    if c%4==0: e("s_sub_u32 s38, s38, s40")
                e(f"s_add_u32 s41, s37, {(64*c+16*eidx)*st}")
                e(f"s_add_u32 m0, s38, {eidx*1024}")
                e("buffer_load_dwordx4 v4, s[20:23], s41 offen lds", tag=('G',c))
            return f
        def xd(q):
            def f():
                e.wait_lg_tag(('x',c-2))
                e(f"s_add_u32 m0, s36, {(c%2)*4096+q*1024-c*128 & 0xffffffff}")
                e(f"buffer_load_dwordx4 v{2+(q&1)}, s[16:19], s{32+q} offen offset:{c*128} lds", tag=('G',c))
            return f
        return [wd(0),wd(1)]+[xd(q) for q in range(4)]
    for f in group(0)[2:]+group(0)[:2]+group(1)[2:]+group(1)[:2]: f()
    e("v_and_b32 v5, 31, v1\nv_lshrrev_b32 v6, 5, v1\nv_lshrrev_b32 v7, 1, v5\nv_and_b32 v7, 7, v7\nv_xor_b32 v7, v7, v6\nv_lshlrev_b32 v7, 4, v7\nv_lshlrev_b32 v5, 7, v5\nv_add_u32 v5, s36, v5")
    for kk in range(4): e(f"v_xor_b32 v{8+kk}, {32*kk}, v7\nv_add_u32 v{8+kk}, v{8+kk}, v5")
    e("v_lshrrev_b32 v5, 5, v1\nv_lshlrev_b32 v5, 9, v5\nv_bfe_u32 v6, v1, 2, 2\nv_lshlrev_b32 v6, 6, v6\nv_add_u32 v5, v5, v6\nv_bfe_u32 v6, v1, 4, 1\nv_lshlrev_b32 v6, 5, v6\nv_add_u32 v5, v5, v6\nv_and_b32 v6, 3, v1\nv_lshlrev_b32 v6, 3, v6\nv_add_u32 v12, v5, v6")
    e(f"v_add_u32 v13, {T3}, v12\nv_add_u32 v14, {T4}, v12")
    if mode=='h':
        e("v_lshlrev_b32 v15, 4, v1\ns_mul_i32 s45, s31, 294912\ns_mul_i32 s41, s30, 12288\ns_add_u32 s45, s45, s41")
        e(f"s_mov_b32 s46, {hex(f32bits(-1.4426950408889634))}")
    else:
        e("v_and_b32 v5, 31, v1\nv_lshlrev_b32 v5, 12, v5\nv_lshrrev_b32 v6, 5, v1\nv_lshlrev_b32 v6, 4, v6\nv_add_u32 v15, v5, v6")
        e(f"s_mul_i32 s45, s30, {192*4096}\ns_lshl_b32 s41, s31, 6\ns_add_u32 s45, s45, s41")
    e(f"s_mul_i32 s47, s28, {16*st}\ns_add_u32 s47, s47, s43\ns_lshl_b32 s48, s28, 10\ns_and_b32 s41, s28, 3\ns_add_u32 s41, s41, 32\ns_mul_i32 s49, s41, {16*st}\ns_add_u32 s49, s49, s43\ns_lshl_b32 s50, s41, 10")
    steps=[(t,4*c+kk) for c in range(9) for kk in range(4) for t in range(3)]+[(t,k) for t in (3,4,5) for k in range(36)]
    slot={0:0,1:1,2:2,3:3,4:0,5:1}
    def frag_read(m):
        t,k=steps[m]; r=FR+4*(m%NR)
        if t<3: base,off=12,WR+((k//4)%4)*12288+t*4096+(k%4)*1024
        elif t==3: base,off=13,k*1024
        elif t==4: base,off=14,k*1024
        else: base,off=12,T5+k*1024
        e(f"ds_read_b64_tr_b16 v[{r}:{r+1}], v{base} offset:{off}")
        e(f"ds_read_b64_tr_b16 v[{r+2}:{r+3}], v{base} offset:{off+256}")
    def xreads(c):
        for kk in range(4):
            r=XF+4*(4*c+kk); e(f"ds_read_b128 v[{r}:{r+3}], v{8+kk} offset:{(c%2)*4096}", tag=('x',c))
    def tdma(t,ei):
        def f():
            base = T4 if t==4 else T5
            if ei<4:
                e(f"s_add_u32 s41, s47, {ei*128*st+t*64}\ns_add_u32 m0, s48, {base+ei*8192}")
            else:
                e(f"s_add_u32 s41, s49, {t*64}\ns_add_u32 m0, s50, {base}")
            e("buffer_load_dwordx4 v4, s[20:23], s41 offen lds", tag='T')
        return f
    def epi(t):
        a=ACC+16*slot[t]; L=[]
        for half in range(2):
            P=16+4*((2*t+half)%2)
            for p in range(4):
                x0=a+8*half+2*p; x1=x0+1
                if mode=='h':
                    t0=24+2*(p%2); t1=t0+1
                    L+= [f"v_mul_f32 v{t0}, s46, v{x0}", f"v_mul_f32 v{t1}, s46, v{x1}", f"v_exp_f32 v{t0}, v{t0}", f"v_exp_f32 v{t1}, v{t1}",
                         f"v_add_f32 v{t0}, 1.0, v{t0}", f"v_add_f32 v{t1}, 1.0, v{t1}", f"v_rcp_f32 v{t0}, v{t0}", f"v_rcp_f32 v{t1}, v{t1}",
                         f"v_mul_f32 v{t0}, v{x0}, v{t0}", f"v_mul_f32 v{t1}, v{x1}, v{t1}", f"v_cvt_pk_bf16_f32 v{P+p}, v{t0}, v{t1}"]
                else:
                    L.append(f"v_cvt_pk_bf16_f32 v{P+p}, v{x0}, v{x1}")
            if mode=='h':
                L.append(f"s_add_u32 s51, s45, {t*2048+half*1024}\nbuffer_store_dwordx4 v[{P}:{P+3}], v15, s[24:27], s51 offen {sc}")
            else:
                L.append(f"s_add_u32 s51, s45, {t*32*4096}\nbuffer_store_dwordx4 v[{P}:{P+3}], v15, s[24:27], s51 offen offset:{half*32} {sc}")
        return L
    fill={m:[] for m in range(len(steps)+1)}
    for c in range(2,9):
        g=group(c); b=12*(c-2)
        for j,f in enumerate(g): fill[b+j*(2 if opt.get('gspread',1) else 1)//(1)].append(f)
    for j,f in enumerate([tdma(t,ei) for t in (4,5) for ei in range(5)]): fill[98+j].append(f)
    ops=[o for t in range(5) for o in epi(t)]
    for o,p in zip(ops, spread(len(ops),109,216)): fill[p].append(o)
    e.wait_vm_tag(('G',0)); e("s_barrier"); xreads(0)
    for m in range(RA): frag_read(m)
    for m,(t,k) in enumerate(steps):
        mr=m+RA
        if mr<108 and mr%12==0:
            c=mr//12; e.wait_vm_tag(('G',c)); e("s_barrier"); xreads(c)
        if m==97: e("s_barrier")
        if mr==144: e.wait_vm_tag('T'); e("s_barrier")
        if mr<len(steps): frag_read(mr)
        a=ACC+16*slot[t]; r=FR+4*(m%NR); xr=XF+4*k
        cin = f"v[{a}:{a+15}]" if k>0 else "0"
        if mode=='h': e(f"v_mfma_f32_32x32x16_bf16 v[{a}:{a+15}], v[{r}:{r+3}], v[{xr}:{xr+3}], {cin}")
        else:         e(f"v_mfma_f32_32x32x16_bf16 v[{a}:{a+15}], v[{xr}:{xr+3}], v[{r}:{r+3}], {cin}")
        for f in fill[m]:
            if callable(f): f()
            else: e(f)
    for o in epi(5): e(o)
    e("s_endpgm")
def gate(e):
    e("s_lshl_b32 s31, s29, 3\ns_add_u32 s31, s31, s28\ns_mul_i32 s32, s31, 1152")
    for q in (1,2,3): e(f"s_add_u32 s{32+q}, s32, {q*8*64*1152}")
    srd(e,20,10,1152); srd(e,24,8,G_SZ,G_OFF)
    e("v_and_b32 v1, 63, v0\nv_lshrrev_b32 v4, 3, v1\nv_and_b32 v5, 7, v1\nv_lshlrev_b32 v3, 4, v5\ns_mov_b32 s41, 73728\nv_mul_lo_u32 v2, v4, s41\nv_add_u32 v2, v2, v3")
    for c in range(9): e(f"buffer_load_dwordx4 v[{16+4*c}:{19+4*c}], v3, s[20:23], 0 offen offset:{128*c}")
    for q in range(4):
        for c in range(9):
            r=64+4*(9*q+c); e(f"buffer_load_dwordx4 v[{r}:{r+3}], v2, s[16:19], s{32+q} offen offset:{128*c}")
    for q in range(4):
        e(f"v_mov_b32 v{8+q}, 0")
        for c in range(9):
            r=64+4*(9*q+c)
            for j in range(4): e(f"v_dot2c_f32_bf16 v{8+q}, v{r+j}, v{16+4*c+j}")
    e("s_nop 4")
    for q in range(4):
        a=8+q
        e(f"v_add_f32_dpp v{a}, v{a}, v{a} quad_perm:[1,0,3,2] row_mask:0xf bank_mask:0xf")
        e(f"v_add_f32_dpp v{a}, v{a}, v{a} quad_perm:[2,3,0,1] row_mask:0xf bank_mask:0xf")
        e(f"v_add_f32_dpp v{a}, v{a}, v{a} row_half_mirror row_mask:0xf bank_mask:0xf")
        e(f"v_mul_f32 v{a}, {hex(f32bits(-1.4426950408889634))}, v{a}\nv_exp_f32 v{a}, v{a}\nv_add_f32 v{a}, 1.0, v{a}\nv_rcp_f32 v{a}, v{a}")
    e("v_lshlrev_b32 v4, 2, v4\nv_lshlrev_b32 v5, 20, v5\nv_add_u32 v4, v4, v5\ns_lshl_b32 s41, s31, 7")
    for q in range(4): e(f"buffer_store_dword v{8+q}, v4, s[24:27], s41 offen offset:{32*q}")
    e("s_endpgm")
def wtrans(e):
    e("s_sub_u32 s29, s2, 224\ns_lshl_b32 s29, s29, 3\ns_add_u32 s29, s29, s28")
    e("s_and_b32 s30, s29, 63\ns_bfe_u32 s31, s29, 0x10006\ns_lshr_b32 s32, s29, 7")
    e("s_cmp_eq_u32 s32, 0\ns_cselect_b32 s16, s12, s14\ns_cselect_b32 s17, s13, s15")
    e(f"s_mov_b32 s18, {2048*578}\ns_mov_b32 s19, 0x20000")
    srd(e,24,8,WT_SZ,WT_OFF)
    e("s_and_b32 s33, s30, 31\ns_lshr_b32 s34, s30, 5\ns_lshl_b32 s34, s34, 7\ns_add_u32 s33, s33, s34\ns_lshl_b32 s34, s31, 10\ns_add_u32 s33, s33, s34\ns_mul_i32 s33, s33, 578")
    for r in range(16): e(f"s_add_u32 s{40+r}, s33, {32*(8*(r//4)+r%4)*578}")
    e("s_lshl_b32 s35, s31, 12\ns_lshl_b32 s34, s32, 11\ns_add_u32 s35, s35, s34\ns_lshl_b32 s34, s30, 5\ns_add_u32 s35, s35, s34")
    e("v_and_b32 v1, 63, v0\nv_lshlrev_b32 v2, 1, v1\nv_lshlrev_b32 v3, 13, v1")
    e("v_cmp_gt_u32 vcc, 33, v1\nv_mov_b32 v6, 0x7f000000\nv_cndmask_b32 v4, v6, v2, vcc\nv_cndmask_b32 v5, v6, v3, vcc")
    def ld(mb):
        for r in range(16):
            e(f"buffer_load_ushort v{64+16*mb+r}, v{2 if mb<4 else 4}, s[16:19], s{40+r} offen offset:{128*mb}")
    def st(mb):
        for p in range(8): e(f"v_lshl_or_b32 v{16+8*mb+p}, v{64+16*mb+2*p+1}, 16, v{64+16*mb+2*p}")
        e(f"s_add_u32 s36, s35, {mb*64*8192}")
        for t in range(2):
            d=16+8*mb+4*t
            e(f"buffer_store_dwordx4 v[{d}:{d+3}], v{3 if mb<4 else 5}, s[24:27], s36 offen offset:{16*t}")
    ld(0); ld(1); ld(2); st(0); ld(3); st(1); ld(4); st(2); st(3); st(4)
    e("s_endpgm")
def k1(name, opt):
    e=Em()
    e.raw(f".globl {name}\n.p2align 8\n.type {name},@function\n{name}:")
    e("s_cmp_ge_u32 s2, 256\ns_cbranch_scc1 K1_END")
    e("s_load_dwordx2 s[4:5], s[0:1], 0\ns_load_dwordx2 s[6:7], s[0:1], 32\ns_load_dwordx2 s[8:9], s[0:1], 72\ns_load_dwordx2 s[10:11], s[0:1], 48\ns_load_dwordx4 s[12:15], s[0:1], 8")
    e("v_lshrrev_b32 v1, 6, v0\nv_readfirstlane_b32 s28, v1")
    e("s_and_b32 s3, s2, 7\ns_lshr_b32 s41, s2, 3")
    e("s_and_b32 s29, s3, 1\ns_lshl_b32 s29, s29, 2\ns_and_b32 s42, s41, 3\ns_add_u32 s29, s29, s42")
    e("s_lshr_b32 s30, s3, 1\ns_mul_i32 s30, s30, 7\ns_lshr_b32 s42, s41, 2\ns_add_u32 s30, s30, s42")
    e("s_waitcnt lgkmcnt(0)")
    srd(e,16,4,2048*1152)
    e("s_cmp_ge_u32 s2, 224\ns_cbranch_scc1 K1_WT")
    ew=e.fork()
    e("s_cmp_eq_u32 s30, 27\ns_cbranch_scc1 K1_GATE")
    eg=e.fork()
    e("s_cmp_ge_u32 s30, 24\ns_cbranch_scc1 K1_U")
    eu=e.fork()
    srd(e,20,6,576*9216); srd(e,24,8,H_SZ,H_OFF)
    gemm(e,'h',opt)
    eu.label("K1_U")
    pcptr(eu,20,"FTAB","K1_pc1")
    eu(f"s_mov_b32 s22, {576*1152}\ns_mov_b32 s23, 0x20000\ns_sub_u32 s30, s30, 24")
    srd(eu,24,8,U_SZ,U_OFF)
    gemm(eu,'u',opt)
    eg.label("K1_GATE"); gate(eg)
    ew.label("K1_WT"); wtrans(ew)
    ew.label("K1_END"); ew("s_endpgm")
    return '\n'.join([e.text(),eu.text(),eg.text(),ew.text()])
```

```python
from common import *
K2_GRID=232; K2_LDS=163840
def gemm2(e, opt):
    CK=opt.get('ck',4); NS=16//CK; NC=72//CK; TS=CK*1024; SL=CK*10240; RA=opt.get('ra2',6); NR=RA+1
    psc=opt.get('psc','')
    e("s_and_b32 s29, s3, 1\ns_lshl_b32 s29, s29, 3\ns_and_b32 s42, s41, 7\ns_add_u32 s29, s29, s42\ns_lshr_b32 s30, s41, 3\ns_lshr_b32 s31, s3, 1")
    e("v_and_b32 v1, 63, v0")
    e("s_cmp_ge_u32 s28, 4\ns_cbranch_scc1 K2_LOAD")
    el=e.fork()
    srd(e,24,8,P_SZ,P_OFF)
    e("v_lshrrev_b32 v5, 5, v1\nv_lshlrev_b32 v5, 8, v5\nv_bfe_u32 v6, v1, 2, 2\nv_lshlrev_b32 v6, 6, v6\nv_add_u32 v5, v5, v6")
    e("v_and_b32 v6, 1, v1\nv_lshlrev_b32 v6, 5, v6\nv_add_u32 v5, v5, v6\nv_bfe_u32 v6, v1, 4, 1\nv_lshlrev_b32 v6, 4, v6\nv_add_u32 v5, v5, v6\nv_bfe_u32 v6, v1, 1, 1\nv_lshlrev_b32 v6, 3, v6\nv_add_u32 v8, v5, v6")
    for s in range(1,4): e(f"v_add_u32 v{8+s}, {s*40960}, v8")
    e(f"v_lshlrev_b32 v2, 4, v1\ns_mul_i32 s42, s28, {TS}\ns_add_u32 s42, s42, {6*TS}\nv_add_u32 v12, s42, v2")
    for s in range(1,4): e(f"v_add_u32 v{12+s}, {s*40960}, v12")
    e(f"s_lshl_b32 s45, s29, 2\ns_add_u32 s45, s45, s28\ns_mul_i32 s45, s45, {18*2048}\ns_mul_i32 s42, s31, {64*18*2048}\ns_add_u32 s45, s45, s42\ns_mul_i32 s42, s30, {6*2048}\ns_add_u32 s45, s45, s42")
    ACC=160; FR=64; HF=16
    steps=[(n,t) for n in range(72) for t in range(6)]
    def addr(n):
        c=n//CK; so=(c%NS)*SL; return so//40960, so%40960+(n%CK)*1024
    def frag_read(m):
        n,t=steps[m]; q,o=addr(n); r=FR+4*(m%NR)
        if t==0:
            hr=HF+4*(n%2); e(f"ds_read_b128 v[{hr}:{hr+3}], v{12+q} offset:{o}")
        e(f"ds_read_b64_tr_b16 v[{r}:{r+1}], v{8+q} offset:{o+t*TS}")
        e(f"ds_read_b64_tr_b16 v[{r+2}:{r+3}], v{8+q} offset:{o+t*TS+512}")
    e("s_barrier")
    for m in range(RA): frag_read(m)
    for m,(n,t) in enumerate(steps):
        mr=m+RA
        if mr<len(steps):
            if mr%(6*CK)==0: e("s_barrier")
            frag_read(mr)
        a=ACC+16*t; r=FR+4*(m%NR); hr=HF+4*(n%2)
        cin=f"v[{a}:{a+15}]" if n>0 else "0"
        e(f"v_mfma_f32_32x32x16_bf16 v[{a}:{a+15}], v[{r}:{r+3}], v[{hr}:{hr+3}], {cin}")
    for t in range(6):
        a=ACC+16*t
        e(f"s_add_u32 s46, s45, {t*2048}")
        for half in range(2):
            P=24+8*(t%2)+4*half
            for p in range(4): e(f"v_cvt_pk_bf16_f32 v{P+p}, v{a+8*half+2*p}, v{a+8*half+2*p+1}")
            e(f"buffer_store_dwordx4 v[{P}:{P+3}], v2, s[24:27], s46 offen offset:{half*1024} {psc}")
    e("s_endpgm")
    e=el; e.label("K2_LOAD")
    srd(e,16,8,H_SZ,H_OFF); srd(e,20,6,4608*1152)
    e("s_sub_u32 s32, s28, 4")
    e("v_lshlrev_b32 v2, 4, v1\nv_lshrrev_b32 v5, 2, v1\ns_mov_b32 s42, 1152\nv_mul_lo_u32 v5, v5, s42\nv_and_b32 v6, 3, v1\nv_lshlrev_b32 v6, 4, v6\nv_add_u32 v4, v5, v6")
    e(f"s_lshl_b32 s33, s29, 2\ns_add_u32 s33, s33, s32\ns_mul_i32 s33, s33, 294912\ns_mul_i32 s42, s31, {36*2048}\ns_add_u32 s33, s33, s42")
    e(f"s_mul_i32 s34, s32, {TS}\ns_add_u32 s34, s34, {6*TS}")
    if CK==4:
        e(f"s_mul_i32 s35, s32, {16*1152}\ns_lshl_b32 s36, s32, 10"); tiles=range(6)
    else:
        e(f"s_and_b32 s42, s32, 1\ns_mul_i32 s35, s42, {16*1152}\ns_lshl_b32 s36, s42, 10\ns_lshr_b32 s42, s32, 1\ns_mul_i32 s43, s42, 192\ns_add_u32 s35, s35, s43\ns_mul_i32 s43, s42, {3*TS}\ns_add_u32 s36, s36, s43"); tiles=range(3)
    e(f"s_mul_i32 s42, s31, {1152*1152}\ns_add_u32 s35, s35, s42\ns_mul_i32 s42, s30, 384\ns_add_u32 s35, s35, s42")
    hsc=opt.get('hld','')
    def chunk(c):
        so=(c%NS)*SL
        e(f"s_add_u32 s37, s35, {c*16*CK*1152}")
        for t in tiles:
            e(f"s_add_u32 m0, s36, {so+t*TS-t*64}")
            e(f"buffer_load_dwordx4 v4, s[20:23], s37 offen offset:{t*64} lds", tag=c)
        e(f"s_add_u32 s38, s33, {c*CK*1024}\ns_add_u32 m0, s34, {so}")
        for kk in range(CK): e(f"buffer_load_dwordx4 v2, s[16:19], s38 offen offset:{kk*1024} lds {hsc}", tag=c)
    for c in range(NS-1): chunk(c)
    for c in range(NC):
        e.wait_vm_tag(c); e("s_barrier")
        if c>=1 and c+NS-2<NC: chunk(c+NS-2)
    e("s_endpgm")
    return el
def fft(e, opt):
    C32=0;S32=2048;N32=4096;C64=6144;S64=14336;N64=22528;T1=30720;T2=47104
    zsc=opt.get('zsc','')
    e("s_sub_u32 s29, s41, 24\ns_lshl_b32 s29, s29, 3\ns_add_u32 s29, s29, s3\ns_cmp_ge_u32 s29, 37\ns_cbranch_scc1 K2_END")
    e("s_lshl_b32 s29, s29, 3\ns_add_u32 s29, s29, s28")
    pcptr(e,12,"FFTTAB","K2_pc1")
    e(f"s_mov_b32 s14, {64*1024}\ns_mov_b32 s15, 0x20000")
    e("v_and_b32 v1, 63, v0\nv_lshlrev_b32 v2, 4, v1\nv_lshlrev_b32 v7, 4, v0\nv_and_b32 v7, 0x1c00, v7\nv_lshlrev_b32 v7, 3, v7\nv_add_u32 v7, v7, v2")
    e("s_lshl_b32 m0, s28, 13")
    for i in range(4): e(f"buffer_load_dwordx4 v7, s[12:15], 0 offen offset:{i*1024} lds", tag='T')
    e("s_movk_i32 s42, 0x1000\ns_add_u32 m0, m0, s42")
    for i in range(4): e(f"buffer_load_dwordx4 v7, s[12:15], s42 offen offset:{i*1024} lds", tag='T')
    e("s_cmp_le_u32 s29, 288\ns_cbranch_scc1 K2_FGO")
    e2=e.fork()
    e2.wait_vm_tag('T'); e2("s_barrier\ns_endpgm")
    e.out.append(e2.text())
    e.label("K2_FGO")
    srd(e,16,8,U_SZ,U_OFF); srd(e,20,8,WT_SZ,WT_OFF); srd(e,24,8,ZT_SZ,ZT_OFF)
    e("s_lshl_b32 s30, s29, 12\ns_add_u32 s31, s30, %d"%(288*4096))
    e("s_cmp_eq_u32 s29, 0\ns_cselect_b32 s31, 0x7f000000, s31\ns_cmp_eq_u32 s29, 288\ns_cselect_b32 s31, 0x7f000000, s31")
    e("v_and_b32 v5, 31, v1\nv_lshlrev_b32 v5, 6, v5\nv_lshrrev_b32 v6, 5, v1\nv_lshlrev_b32 v3, 4, v6\nv_add_u32 v3, v3, v5\nv_add_u32 v4, s31, v3")
    PA=96; PB=64; WR=32; A1=128; A2=192
    def pk(base,T,ri,t): r=base+16*T+8*ri+4*t; return f"v[{r}:{r+3}]"
    def ac(base,T,ri): r=base+32*T+16*ri; return f"v[{r}:{r+15}]"
    for T in range(2):
        for t in range(2):
            e(f"buffer_load_dwordx4 {pk(PB,T,0,t)}, v3, s[16:19], s30 offen offset:{T*2048+t*32}")
            e(f"buffer_load_dwordx4 {pk(PB,T,1,t)}, v4, s[16:19], 0 offen offset:{T*2048+t*32}")
    e("v_lshlrev_b32 v7, 5, v1\ns_lshl_b32 s32, s29, 13\ns_add_u32 s33, s32, 4096")
    for mt in range(2):
        for ri in range(2):
            for q in range(2): e(f"buffer_load_dwordx4 {pk(WR,mt,ri,q)}, v7, s[20:23], s{32+mt} offen offset:{ri*2048+q*16}")
    e("v_lshlrev_b32 v6, 5, v6\nv_add_u32 v5, v5, v6\nv_add_u32 v6, s31, v5")
    e.wait_vm_tag('T'); e("s_barrier")
    def cr(i): return f"v[{8+4*i}:{11+4*i}]"
    def mf(D,A,B,first): e(f"v_mfma_f32_32x32x16_bf16 {D}, {A}, {B}, {'0' if first else D}")
    def ld32():
        for i,o in enumerate([C32,C32+1024,S32,S32+1024,N32,N32+1024]): e(f"ds_read_b128 {cr(i)}, v2 offset:{o}")
    def twid(src,dst,tmp,tab):
        def rd(i): e(f"ds_read_b128 {cr(i%6)}, v2 offset:{tab+i*1024}")
        for i in range(5): rd(i)
        for i in range(16):
            T,rp=i//8,i%8
            if i+5<16: rd(i+5)
            w=8+4*(i%6); ar=src+32*T+2*rp; ai=ar+16; tt=tmp+4*(i%2)
            for u in range(2):
                e(f"v_mul_f32 v{tt+u}, v{ar+u}, v{w+2*u}\nv_mul_f32 v{tt+2+u}, v{ai+u}, v{w+2*u}")
            for u in range(2):
                e(f"v_fma_f32 v{tt+u}, -v{ai+u}, v{w+2*u+1}, v{tt+u}\nv_fma_f32 v{tt+2+u}, v{ar+u}, v{w+2*u+1}, v{tt+2+u}")
            e(f"v_cvt_pk_bf16_f32 v{dst+16*T+rp}, v{tt}, v{tt+1}\nv_cvt_pk_bf16_f32 v{dst+16*T+8+rp}, v{tt+2}, v{tt+3}")
    ld32()
    for T in range(2):
        for t in range(2):
            mf(ac(A1,T,0),pk(PB,T,0,t),cr(t),t==0); mf(ac(A1,T,1),pk(PB,T,1,t),cr(t),t==0)
            mf(ac(A1,T,0),pk(PB,T,1,t),cr(2+t),False); mf(ac(A1,T,1),pk(PB,T,0,t),cr(4+t),False)
    twid(A1,PA,A2,T1)
    def big(kind):
        seq=[(o,ks) for o in range(2) for ks in range(4)]
        def rd(i):
            o,ks=seq[i]
            for z,b in enumerate((C64,S64,N64)): e(f"ds_read_b128 {cr(3*(i%2)+z)}, v2 offset:{b+(4*o+ks)*1024}")
        rd(0)
        for i,(o,ks) in enumerate(seq):
            c,s_,n=[cr(3*(i%2)+z) for z in range(3)]
            if kind==2:
                dr,di=pk(PA,ks//2,0,ks%2),pk(PA,ks//2,1,ks%2)
                mf(ac(A2,o,0),c,dr,ks==0)
                if i+1<8: rd(i+1)
                mf(ac(A2,o,1),c,di,ks==0); mf(ac(A2,o,0),s_,di,False); mf(ac(A2,o,1),n,dr,False)
            else:
                dr,di=pk(PB,ks//2,0,ks%2),pk(PB,ks//2,1,ks%2)
                mf(ac(A1,o,0),dr,c,ks==0)
                if i+1<8: rd(i+1)
                mf(ac(A1,o,1),di,c,ks==0); mf(ac(A1,o,0),di,n,False); mf(ac(A1,o,1),dr,s_,False)
    big(2)
    for i in range(16):
        mt,rp=i//8,i%8
        ar=A2+32*mt+2*rp; ai=ar+16; wr=WR+16*mt+rp; wi=wr+8; tt=A1+8*(i%2)
        e(f"v_lshlrev_b32 v{tt+4}, 16, v{wr}\nv_and_b32 v{tt+5}, 0xffff0000, v{wr}\nv_lshlrev_b32 v{tt+6}, 16, v{wi}\nv_and_b32 v{tt+7}, 0xffff0000, v{wi}")
        for u in range(2): e(f"v_mul_f32 v{tt+u}, v{ar+u}, v{tt+4+u}\nv_mul_f32 v{tt+2+u}, v{ai+u}, v{tt+4+u}")
        for u in range(2): e(f"v_fma_f32 v{tt+u}, -v{ai+u}, v{tt+6+u}, v{tt+u}\nv_fma_f32 v{tt+2+u}, v{ar+u}, v{tt+6+u}, v{tt+2+u}")
        e(f"v_cvt_pk_bf16_f32 v{PB+16*mt+rp}, v{tt}, v{tt+1}\nv_cvt_pk_bf16_f32 v{PB+16*mt+8+rp}, v{tt+2}, v{tt+3}")
    big(3)
    twid(A1,PA,A2,T2)
    ld32()
    for T in range(2):
        for t in range(2):
            mf(ac(A2,T,0),cr(t),pk(PA,T,0,t),t==0); mf(ac(A2,T,1),cr(t),pk(PA,T,1,t),t==0)
            mf(ac(A2,T,0),cr(4+t),pk(PA,T,1,t),False); mf(ac(A2,T,1),cr(2+t),pk(PA,T,0,t),False)
    for T in range(2):
        for ri in range(2):
            for q in range(2):
                a=A2+32*T+16*ri+8*q; P=PB+16*T+8*ri+4*q
                for p in range(4): e(f"v_cvt_pk_bf16_f32 v{P+p}, v{a+2*p}, v{a+2*p+1}")
                if ri==0: e(f"buffer_store_dwordx4 v[{P}:{P+3}], v5, s[24:27], s30 offen offset:{T*2048+q*16} {zsc}")
                else:     e(f"buffer_store_dwordx4 v[{P}:{P+3}], v6, s[24:27], 0 offen offset:{T*2048+q*16} {zsc}")
    e("s_endpgm")
def k2(name,opt):
    e=Em()
    e.raw(f".globl {name}\n.p2align 8\n.type {name},@function\n{name}:")
    e(f"s_cmp_ge_u32 s2, {K2_GRID}\ns_cbranch_scc1 K2_END")
    e("s_load_dwordx2 s[6:7], s[0:1], 40\ns_load_dwordx2 s[8:9], s[0:1], 72")
    e("v_lshrrev_b32 v1, 6, v0\nv_readfirstlane_b32 s28, v1")
    e("s_and_b32 s3, s2, 7\ns_lshr_b32 s41, s2, 3")
    e("s_waitcnt lgkmcnt(0)")
    e("s_cmp_ge_u32 s41, 24\ns_cbranch_scc1 K2_FFT")
    ef=e.fork()
    el=gemm2(e,opt)
    ef.label("K2_FFT"); fft(ef,opt)
    ef.label("K2_END"); ef("s_endpgm")
    return '\n'.join([e.text(),el.text(),ef.text()])
```

```python
from common import *
K3_GRID=192; K3_BLOCK=384; K3_LDS=73728; K3_VGPR=256
def k3(name,opt):
    e=Em()
    e.raw(f".globl {name}\n.p2align 8\n.type {name},@function\n{name}:")
    e(f"s_cmp_ge_u32 s2, {K3_GRID}\ns_cbranch_scc1 K3_END")
    e("s_load_dwordx2 s[6:7], s[0:1], 56\ns_load_dwordx2 s[8:9], s[0:1], 72")
    e("v_lshrrev_b32 v1, 6, v0\nv_readfirstlane_b32 s28, v1")
    e("s_and_b32 s3, s2, 7\ns_lshr_b32 s41, s2, 3")
    e("s_lshl_b32 s29, s3, 2\ns_and_b32 s42, s41, 3\ns_add_u32 s29, s29, s42\ns_lshr_b32 s30, s41, 2")
    e("s_cmp_ge_u32 s28, 3\ns_cselect_b32 s31, 1, 0\ns_mul_i32 s42, s31, 3\ns_sub_u32 s32, s28, s42\ns_lshl_b32 s33, s29, 1\ns_add_u32 s33, s33, s31\ns_mul_i32 s34, s30, 3\ns_add_u32 s34, s34, s32")
    e("v_and_b32 v1, 63, v0\nv_lshrrev_b32 v5, 2, v1\nv_lshlrev_b32 v5, 12, v5\nv_and_b32 v6, 3, v1\nv_lshlrev_b32 v6, 4, v6\nv_add_u32 v4, v5, v6\nv_lshlrev_b32 v2, 4, v1")
    pcptr(e,12,"GTAB","K3_pc1")
    e(f"s_mov_b32 s14, {576*1152}\ns_mov_b32 s15, 0x20000")
    e("s_waitcnt lgkmcnt(0)")
    srd(e,16,8,ZT_SZ,ZT_OFF)
    e(f"s_mul_i32 s35, s32, {192*4096}\ns_lshl_b32 s42, s33, 6\ns_add_u32 s35, s35, s42\ns_mul_i32 s36, s31, 36864\ns_mul_i32 s42, s32, {192*64}\ns_add_u32 s36, s36, s42")
    for i in range(12):
        e(f"s_add_u32 s37, s35, {16*i*4096}\ns_add_u32 m0, s36, {i*1024}")
        e("buffer_load_dwordx4 v4, s[16:19], s37 offen lds", tag='Z')
    GF=112
    e("s_mul_i32 s38, s34, 36864")
    for k in range(36):
        if k%4==0 and k>0: e("s_add_u32 s38, s38, 4096")
        e(f"buffer_load_dwordx4 v[{GF+4*k}:{GF+4*k+3}], v2, s[12:15], s38 offen offset:{(k%4)*1024}")
    srd(e,20,8,P_SZ,P_OFF); srd(e,24,8,G_SZ,G_OFF)
    e(f"s_mul_i32 s39, s33, {18*2048}\ns_lshl_b32 s42, s34, 11\ns_add_u32 s39, s39, s42")
    PR=64
    for ks in range(4):
        if ks: e(f"s_add_u32 s39, s39, {64*18*2048}")
        for q in range(2): e(f"buffer_load_dwordx4 v[{PR+8*ks+4*q}:{PR+8*ks+4*q+3}], v2, s[20:23], s39 offen offset:{q*1024}")
    e("v_and_b32 v5, 31, v1\nv_lshlrev_b32 v6, 2, v5\ns_lshl_b32 s40, s33, 7\nbuffer_load_dword v3, v6, s[24:27], s40 offen")
    e("s_mov_b32 s42, 73728\nv_mul_lo_u32 v7, v5, s42\nv_lshrrev_b32 v6, 5, v1\nv_lshlrev_b32 v6, 5, v6\nv_add_u32 v7, v7, v6")
    e("s_mul_i32 s43, s33, 1152\ns_lshl_b32 s42, s34, 6\ns_add_u32 s43, s43, s42")
    srd(e,44,6,2048*1152)
    e("v_lshrrev_b32 v5, 5, v1\nv_lshlrev_b32 v5, 9, v5\nv_bfe_u32 v6, v1, 2, 2\nv_lshlrev_b32 v6, 6, v6\nv_add_u32 v5, v5, v6")
    e("v_and_b32 v6, 1, v1\nv_lshlrev_b32 v6, 5, v6\nv_add_u32 v5, v5, v6\nv_bfe_u32 v6, v1, 4, 1\nv_lshlrev_b32 v6, 4, v6\nv_add_u32 v5, v5, v6\nv_bfe_u32 v6, v1, 1, 1\nv_lshlrev_b32 v6, 3, v6\nv_add_u32 v8, v5, v6")
    e("s_mul_i32 s42, s31, 36864\nv_add_u32 v8, s42, v8")
    e.wait_vm_tag('Z'); e("s_barrier")
    FR=16; RA=5; NR=6; A=48
    def rd(k):
        r=FR+4*(k%NR)
        e(f"ds_read_b64_tr_b16 v[{r}:{r+1}], v8 offset:{k*1024}\nds_read_b64_tr_b16 v[{r+2}:{r+3}], v8 offset:{k*1024+256}")
    for k in range(RA): rd(k)
    for k in range(36):
        if k+RA<36: rd(k+RA)
        r=FR+4*(k%NR)
        e(f"v_mfma_f32_32x32x16_bf16 v[{A}:{A+15}], v[{GF+4*k}:{GF+4*k+3}], v[{r}:{r+3}], {'0' if k==0 else f'v[{A}:{A+15}]'}")
    B=96
    for p in range(8):
        e(f"v_lshlrev_b32 v{B+2*p}, 16, v{PR+p}\nv_and_b32 v{B+2*p+1}, 0xffff0000, v{PR+p}")
        for ks in range(1,4):
            e(f"v_lshlrev_b32 v10, 16, v{PR+8*ks+p}\nv_and_b32 v11, 0xffff0000, v{PR+8*ks+p}\nv_add_f32 v{B+2*p}, v{B+2*p}, v10\nv_add_f32 v{B+2*p+1}, v{B+2*p+1}, v11")
    for q in range(2):
        for p in range(4):
            r=8*q+2*p
            for u in range(2): e(f"v_sub_f32 v{A+r+u}, v{A+r+u}, v{B+r+u}\nv_fma_f32 v{A+r+u}, v3, v{A+r+u}, v{B+r+u}")
            e(f"v_cvt_pk_bf16_f32 v{16+4*q+p}, v{A+r}, v{A+r+1}")
        e(f"buffer_store_dwordx4 v[{16+4*q}:{19+4*q}], v7, s[44:47], s43 offen offset:{q*16}")
    e.label("K3_END"); e("s_endpgm")
    return e.text()
```

```python
from common import *
def big_tables():
    L=[]
    for k in range(576): L.append(f'.set CT{k}, {bf16bits(np.cos(2*np.pi*k/576) if k not in (144,432) else 0.0)}')
    L.append(r'''.altmacro
.macro EC i
.short CT\i
.endm
.p2align 8
FTAB:
.set dd,0
.rept 576
.set ix,0
.rept 289
EC %ix
.set ix,(ix+dd)%576
.endr
.set ix,(dd+144)%576
.rept 287
EC %ix
.set ix,(ix+dd)%576
.endr
.set dd,dd+1
.endr''')
    L.append(f'.set HALFP, {bf16bits(0.5)}\n.set HALFN, {bf16bits(-0.5)}')
    L.append(r'''.macro EG d c
.if \c == 0
.short HALFP
.elseif \c == 288
.if (\d & 1)
.short HALFN
.else
.short HALFP
.endif
.elseif \c < 288
EC %((\d*\c)%576)
.else
EC %((\d*(\c-288)+144)%576)
.endif
.endm
.p2align 8
GTAB:
.set dt,0
.rept 18
.set kk,0
.rept 36
.set ll,0
.rept 64
.set dv,32*dt+16*((ll>>2)&1)+4*((ll>>3)&3)+(ll&3)
.set cv,16*kk+8*(ll>>5)
.rept 8
EG %dv, %cv
.set cv,cv+1
.endr
.set ll,ll+1
.endr
.set kk,kk+1
.endr
.set dt,dt+1
.endr
.noaltmacro''')
    return '\n'.join(L)
def perm8(t,h,j): return 16*t+8*(j//4)+4*h+j%4
def cperm(r,h): return 8*(r//4)+4*h+r%4
def fft_tables():
    W=[]
    def frag(fn):
        for l in range(64):
            v=[bf16bits(fn(l%32,l//32,j)) for j in range(8)]
            for p in range(4): W.append(v[2*p]|(v[2*p+1]<<16))
    def cs(n,idx,kind):
        idx%=n; a=2*np.pi*idx/n
        c=np.cos(a); s=np.sin(a)
        if abs(c)<1e-12:c=0.0
        if abs(s)<1e-12:s=0.0
        return {'c':c,'s':s,'n':-s}[kind]+0.0
    for kind in 'csn':
        for t in range(2): frag(lambda n,h,j: cs(32,n*perm8(t,h,j),kind))
    for kind in 'csn':
        for mt in range(2):
            for ks in range(4): frag(lambda n,h,j: cs(64,(32*mt+n)*(32*(ks//2)+perm8(ks%2,h,j)),kind))
    sc=2.0/(576*2048)
    for which in range(2):
        for tile in range(2):
            for rp in range(8):
                for l in range(64):
                    for r in (2*rp,2*rp+1):
                        if which==0: k1=l%32; s2=32*tile+cperm(r,l//32); a=-2*np.pi*k1*s2/2048; m=1.0
                        else: s2=32*tile+l%32; k1=cperm(r,l//32); a=2*np.pi*k1*s2/2048; m=sc
                        W.append(f32bits(m*np.cos(a))); W.append(f32bits(m*np.sin(a)))
    assert len(W)==62*256
    L=['.p2align 8','FFTTAB:']
    for i in range(0,len(W),8): L.append('.long '+','.join(hex(x) for x in W[i:i+8]))
    return '\n'.join(L)
```

```python
import sys, json
sys.path.insert(0,'gen')
from common import *
import k1, tables
opt={}
which='123'
for a in sys.argv[2:]:
    k,v=a.split('=',1)
    try: v=int(v)
    except: pass
    opt[k]=v
which=str(opt.get('k',which))
hdr=open('cdna_kernels/'+NAME+'.s.ref').read().split('\n')
hdr=[l for l in hdr if l.startswith(';') and 'offset' in l or l.startswith('; Kernarg')]
L=list(hdr); body=[]; desc=[]
if '1' in which:
    L.append(f"; @launch kernel=k1_kernel grid=(256,1,1) block=(512,1,1) lds={k1.K1_LDS}")
    body.append(k1.k1('k1_kernel',opt)); desc.append(kdesc('k1_kernel'))
if '2' in which:
    import k2
    L.append(f"; @launch kernel=k2_kernel grid=({k2.K2_GRID},1,1) block=(512,1,1) lds={k2.K2_LDS}")
    body.append(k2.k2('k2_kernel',opt)); desc.append(kdesc('k2_kernel'))
if '3' in which:
    import k3
    L.append(f"; @launch kernel=k3_kernel grid=({k3.K3_GRID},1,1) block=({k3.K3_BLOCK},1,1) lds={k3.K3_LDS}")
    body.append(k3.k3('k3_kernel',opt)); desc.append(kdesc('k3_kernel',vgpr=k3.K3_VGPR))
L.append('.amdgcn_target "amdgcn-amd-amdhsa--gfx950"\n.text')
L+=body
L.append('.section .rodata,"a"')
for d in desc: L.append('.p2align 6\n'+d)
L.append(tables.fft_tables()); L.append(tables.big_tables())
open(sys.argv[1],'w').write('\n'.join(L)+'\n')
```

```python
import numpy as np
from em import Em
NAME="gated_mix__spectral_gfnet__dense_activation_silu__prompt"
H_OFF   = 0;                 H_SZ  = 64*144*2048
U_OFF   = 0x1400000;         U_SZ  = 576*4096
WT_OFF  = 0x1700000;         WT_SZ = 289*8192
G_OFF   = 0x1A00000;         G_SZ  = 2048*4
ZT_OFF  = 0x1B00000;         ZT_SZ = 576*4096
P_OFF   = 0x1E00000;         P_SZ  = 4*64*18*2048
assert H_OFF+H_SZ<=U_OFF and U_OFF+U_SZ<=WT_OFF and WT_OFF+WT_SZ<=G_OFF
def bf16bits(x):
    u=int(np.float32(x).view(np.uint32)); return ((u+0x7fff+((u>>16)&1))>>16)&0xffff
def f32bits(x): return int(np.float32(x).view(np.uint32))
def srd(e, d, base, size, off=0):
    if off:
        e(f"s_add_u32 s{d}, s{base}, {hex(off)}\ns_addc_u32 s{d+1}, s{base+1}, 0")
    else:
        e(f"s_mov_b32 s{d}, s{base}\ns_mov_b32 s{d+1}, s{base+1}")
    e(f"s_mov_b32 s{d+2}, {hex(size)}\ns_mov_b32 s{d+3}, 0x20000")
def pcptr(e, d, sym, uniq):
    e(f"s_getpc_b64 s[{d}:{d+1}]")
    e(f"s_add_u32 s{d}, s{d}, {sym}@rel32@lo+4\ns_addc_u32 s{d+1}, s{d+1}, {sym}@rel32@hi+12")
def spread(n_items, lo, hi):
    return [lo + (j*(hi-lo))//n_items for j in range(n_items)]
def kdesc(name, vgpr=256, sgpr=96, acc=None):
    return f""".amdhsa_kernel {name}
  .amdhsa_next_free_vgpr {vgpr}
  .amdhsa_next_free_sgpr {sgpr}
  .amdhsa_accum_offset {acc or vgpr}
  .amdhsa_group_segment_fixed_size 0
  .amdhsa_kernarg_size 80
  .amdhsa_user_sgpr_count 2
  .amdhsa_user_sgpr_kernarg_segment_ptr 1
  .amdhsa_system_sgpr_workgroup_id_x 1
.end_amdhsa_kernel"""
TS_OFF=0x3000000
class TS:
    def __init__(s,on,kidx): s.on=on; s.k=kidx
    def start(s,e):
        s.a,s.b=("s_memrealtime","s_memtime") if s.on==1 else ("s_memtime","s_memrealtime")
        if s.on: e(f"{s.a} s[64:65]\n{s.b} s[92:93]")
    def __call__(s,e,i):
        if s.on: e(f"{s.a} s[{64+2*i}:{65+2*i}]")
    def end(s,e,n,wsp=8,wait=True):
        if not s.on: return
        if wait: e("s_waitcnt vmcnt(0)")
        e(f"{s.a} s[{64+2*n}:{65+2*n}]\n{s.b} s[94:95]\ns_waitcnt lgkmcnt(0)")
        e("s_sub_u32 s94, s94, s92\nv_mov_b32 v0, 0")
        for i in range(n+1): e(f"v_writelane_b32 v0, s{64+2*i}, {i}")
        e("v_writelane_b32 v0, s94, 15")
        srd(e,60,wsp,0x200000,TS_OFF)
        e(f"v_mbcnt_lo_u32_b32 v1, -1, 0\nv_mbcnt_hi_u32_b32 v1, -1, v1\nv_lshlrev_b32 v1, 2, v1\ns_lshl_b32 s94, s2, 3\ns_add_u32 s94, s94, s28\ns_lshl_b32 s94, s94, 8\ns_add_u32 s94, s94, {s.k*0x80000}")
        e("buffer_store_dword v0, v1, s[60:63], s94 offen")
```

```python
from common import *
LDS=163840
WS_SZ=0x3000000
FL=0x2800000; HF=FL; UF=FL+0x20000; ZF=FL+0x20400; XF=FL+0x21000
OOB=0x7f000000
T5=0; T3=49152; XR=86016; T4=XR; GW=151552
XFR=112; ACC=48; FR=32; RA=3; NR=4
LOG2E=1.4426950408889634
NV=2
uid=[0]
def check_spin(e, d, vaddr, soff, imm, issue=True):
    uid[0]+=1; u=uid[0]
    ld=f"buffer_load_dwordx2 v[{d}:{d+1}], v{vaddr}, s[24:27], {soff} offen offset:{imm} sc1"
    if issue: e(ld)
    e(f"v_cmp_eq_u64 vcc, v[{d}:{d+1}], v[{NV}:{NV+1}]")
    e(f"s_cmp_eq_u64 vcc, -1\ns_cbranch_scc1 POK{u}")
    e.raw(f"s_mov_b32 s53, 0\nPSP{u}:\n s_sleep 2\n {ld}\n s_add_u32 s53, s53, 1\n s_waitcnt vmcnt(0)\n v_cmp_eq_u64 vcc, v[{d}:{d+1}], v[{NV}:{NV+1}]\n s_cmp_ge_u32 s53, 0x40000\n s_cbranch_scc1 POK{u}\n s_nop 1\n s_cmp_eq_u64 vcc, -1\n s_cbranch_scc0 PSP{u}\nPOK{u}:")
def poll_issue(e, d, vaddr, soff, imm, tag=None):
    e(f"buffer_load_dwordx2 v[{d}:{d+1}], v{vaddr}, s[24:27], {soff} offen offset:{imm} sc1", tag=tag)
def nonce_issue(e, vz):
    e(f"global_load_dwordx2 v[{NV}:{NV+1}], v{vz}, s[100:101] sc1")
def nonce_check(e, vz):
    uid[0]+=1; u=uid[0]
    e(f"v_cmp_ne_u64 vcc, 0, v[{NV}:{NV+1}]")
    e(f"s_cmp_eq_u64 vcc, -1\ns_cbranch_scc1 NOK{u}")
    e.raw(f"s_mov_b32 s53, 0\nNSP{u}:\n s_sleep 2\n global_load_dwordx2 v[{NV}:{NV+1}], v{vz}, s[100:101] sc1\n s_add_u32 s53, s53, 1\n s_waitcnt vmcnt(0)\n v_cmp_ne_u64 vcc, 0, v[{NV}:{NV+1}]\n s_cmp_ge_u32 s53, 0x40000\n s_cbranch_scc1 NOK{u}\n s_nop 1\n s_cmp_eq_u64 vcc, -1\n s_cbranch_scc0 NSP{u}\nNOK{u}:")

def g1(e, mode, opt):
    ts=opt['TS']; H=(mode=='h')
    st = 9216 if H else 1152
    e("s_lshl_b32 s31, s29, 3\ns_add_u32 s31, s31, s28")
    e("s_mul_i32 s32, s31, 1152")
    for q in (1,2,3): e(f"s_add_u32 s{32+q}, s32, {q*8*64*1152}")
    e(f"s_lshl_b32 s36, s28, 13\ns_add_u32 s36, s36, {XR}")
    e("s_mul_i32 s43, s30, 384")
    e(f"s_and_b32 s41, s28, 1\ns_mul_i32 s37, s41, {32*st}\ns_lshr_b32 s42, s28, 1\ns_lshl_b32 s44, s42, 6\ns_add_u32 s37, s37, s44\ns_add_u32 s37, s37, s43")
    e(f"s_lshl_b32 s41, s41, 11\ns_lshl_b32 s38, s42, 12\ns_add_u32 s38, s38, 36864\ns_cmp_eq_u32 s42, 3\ns_cselect_b32 s38, {T3}, s38\ns_cselect_b32 s39, 1, 3\ns_cselect_b32 s40, 0, 49152\ns_lshl_b32 s39, s39, 12\ns_add_u32 s38, s38, s41")
    e("v_and_b32 v1, 63, v0")
    e("v_lshrrev_b32 v4, 3, v1\nv_and_b32 v5, 7, v1\nv_lshrrev_b32 v6, 1, v4\nv_xor_b32 v5, v5, v6\nv_lshlrev_b32 v5, 4, v5")
    e("s_mov_b32 s41, 73728\nv_mul_lo_u32 v4, v4, s41\nv_add_u32 v2, v4, v5\nv_xor_b32 v3, 64, v2")
    e(f"v_lshrrev_b32 v5, 2, v1\ns_mov_b32 s41, {st}\nv_mul_lo_u32 v5, v5, s41\nv_and_b32 v6, 3, v1\nv_lshlrev_b32 v6, 4, v6\nv_add_u32 v4, v5, v6")
    def group(c):
        def wd(eidx):
            def f(e):
                if eidx==0 and c>0:
                    e("s_add_u32 s38, s38, s39")
                    if (c+3)%4==0: e("s_sub_u32 s38, s38, s40")
                e(f"s_add_u32 s41, s37, {(64*c+16*eidx)*st}")
                e(f"s_add_u32 m0, s38, {eidx*1024}")
                e("buffer_load_dwordx4 v4, s[20:23], s41 offen lds", tag=('G',c))
            return f
        def xd(q):
            def f(e):
                e.wait_lg_tag(('x',c-2))
                e(f"s_add_u32 m0, s36, {(c%2)*4096+q*1024-c*128 & 0xffffffff}")
                e(f"buffer_load_dwordx4 v{2+(q&1)}, s[16:19], s{32+q} offen offset:{c*128} lds", tag=('G',c))
            return f
        return [wd(0),wd(1)]+[xd(q) for q in range(4)]
    for f in group(0)[2:]+group(0)[:2]: f(e)
    e(f"v_lshlrev_b32 v15, 4, v1\ns_lshl_b32 s41, s28, 10\nv_add_u32 v5, s41, v15\ns_add_u32 m0, s41, {GW}")
    e("buffer_load_dwordx4 v5, s[12:15], 0 offen lds", tag=('G',0))
    for f in group(1)[2:]+group(1)[:2]: f(e)
    def pfx(e,n,c0,nch,d):
        e(f"s_lshr_b32 s41, s54, 2\ns_mul_i32 s41, s41, {n}\nv_add_u32 v{d}, s41, v1\nv_min_u32 v{d}, {32*nch-1}, v{d}\nv_and_b32 v{d+1}, 31, v{d}\nv_lshrrev_b32 v{d}, 5, v{d}\nv_lshlrev_b32 v{d}, 7, v{d}")
        e(f"s_mov_b32 s41, 73728\nv_mul_lo_u32 v{d+1}, v{d+1}, s41\nv_add_u32 v{d}, v{d}, v{d+1}\nv_cmp_gt_u32 vcc, {n}, v1\nv_mov_b32 v{d+1}, {hex(OOB)}\nv_cndmask_b32 v{d}, v{d+1}, v{d}, vcc")
        return lambda e: e(f"buffer_load_dword v{d}, v{d}, s[16:19], s32 offen offset:{c0*128}")
    def pfw1(e,r0,nr,extra,d):
        e(f"s_and_b32 s41, s54, 3\ns_lshl_b32 s41, s41, 3\ns_add_u32 s41, s41, s28\ns_mul_i32 s42, s41, {nr}\ns_add_u32 s42, s42, {r0}")
        e(f"v_mul_u32_u24 v{d}, 43, v1\nv_lshrrev_b32 v{d}, 7, v{d}\nv_mul_u32_u24 v{d+1}, 3, v{d}\nv_sub_u32 v{d+1}, v1, v{d+1}\nv_add_u32 v{d}, s42, v{d}\nv_mul_u32_u24 v{d}, 9216, v{d}\nv_lshl_add_u32 v{d}, v{d+1}, 7, v{d}")
        if extra:
            e(f"s_lshl_b32 s41, s41, 2\ns_sub_u32 s41, s41, {3*nr}\nv_add_u32 v{d+1}, s41, v1\nv_mul_u32_u24 v{d+1}, 9216, v{d+1}\nv_add_u32 v{d+1}, 256, v{d+1}\nv_cmp_gt_u32 vcc, {3*nr}, v1\nv_cndmask_b32 v{d}, v{d+1}, v{d}, vcc")
        e(f"v_cmp_gt_u32 vcc, {3*nr+(4 if extra else 0)}, v1\nv_mov_b32 v{d+1}, {hex(OOB)}\nv_cndmask_b32 v{d}, v{d+1}, v{d}, vcc")
        return lambda e: e(f"buffer_load_dword v{d}, v{d}, s[20:23], s43 offen")
    pfB=[]
    if H and opt.get('cp',1):
        if opt.get('cpx',0):
            d=96
            e(f"s_lshr_b32 s41, s54, 2\ns_mul_i32 s41, s41, 38\nv_add_u32 v{d}, s41, v1\nv_min_u32 v{d}, 223, v{d}\nv_mul_u32_u24 v{d+1}, 9363, v{d}\nv_lshrrev_b32 v{d+1}, 16, v{d+1}\nv_mul_u32_u24 v100, 7, v{d+1}\nv_sub_u32 v{d}, v{d}, v100\nv_lshlrev_b32 v{d}, 7, v{d}")
            e(f"s_mov_b32 s41, 73728\nv_mul_lo_u32 v{d+1}, v{d+1}, s41\nv_add_u32 v{d}, v{d}, v{d+1}\nv_cmp_gt_u32 vcc, 38, v1\nv_mov_b32 v{d+1}, {hex(OOB)}\nv_cndmask_b32 v{d}, v{d+1}, v{d}, vcc")
            e(f"buffer_load_dword v{d}, v{d}, s[16:19], s32 offen offset:256")
            pfw1(e,128,6,False,98)(e)
            pfB=[pfw1(e,320,8,True,102)]
        else:
            pfx(e,16,2,3,96)(e); pfw1(e,128,6,False,98)(e)
            pfB=[pfx(e,22,5,4,100),pfw1(e,320,8,True,102)]
        if opt.get('cpb',11)<0:
            for f in pfB: f(e)
            pfB=[]
    e("v_and_b32 v5, 31, v1\nv_lshrrev_b32 v6, 5, v1\nv_lshrrev_b32 v7, 1, v5\nv_and_b32 v7, 7, v7\nv_xor_b32 v7, v7, v6\nv_lshlrev_b32 v7, 4, v7\nv_lshlrev_b32 v5, 7, v5\nv_add_u32 v5, s36, v5")
    for kk in range(4): e(f"v_xor_b32 v{8+kk}, {32*kk}, v7\nv_add_u32 v{8+kk}, v{8+kk}, v5")
    e("v_lshrrev_b32 v5, 5, v1\nv_lshlrev_b32 v5, 9, v5\nv_bfe_u32 v6, v1, 2, 2\nv_lshlrev_b32 v6, 6, v6\nv_add_u32 v5, v5, v6\nv_bfe_u32 v6, v1, 4, 1\nv_lshlrev_b32 v6, 5, v6\nv_add_u32 v5, v5, v6\nv_and_b32 v6, 3, v1\nv_lshlrev_b32 v6, 3, v6\nv_add_u32 v12, v5, v6")
    e(f"v_add_u32 v13, {T3}, v12\nv_add_u32 v14, {T4}, v12")
    e(f"v_lshrrev_b32 v5, 2, v1\nv_lshrrev_b32 v6, 4, v1\nv_xor_b32 v5, v5, v6\nv_and_b32 v5, 1, v5\nv_and_b32 v6, 3, v1\nv_or_b32 v5, v5, v6\nv_lshrrev_b32 v7, 5, v1\nv_lshlrev_b32 v7, 4, v7\nv_cmp_eq_u32 vcc, 0, v5\nv_mov_b32 v5, 2048\nv_cndmask_b32 v7, v5, v7, vcc\nv_add_u32 v7, {GW}, v7\nv_mov_b32 v0, 0")
    if H:
        e("s_lshr_b32 s55, s3, 1\ns_lshr_b32 s42, s54, 2\ns_mul_i32 s45, s31, 294912\ns_mul_i32 s41, s55, 73728\ns_add_u32 s45, s45, s41\ns_lshl_b32 s41, s42, 11\ns_add_u32 s45, s45, s41")
        e(f"s_lshl_b32 s52, s31, 2\ns_add_u32 s52, s52, s55\ns_lshl_b32 s52, s52, 9\ns_lshl_b32 s41, s42, 3\ns_add_u32 s52, s52, s41\ns_add_u32 s52, s52, {HF}")
        e(f"s_mov_b32 s46, {hex(f32bits(-LOG2E))}")
    else:
        e(f"s_mul_i32 s45, s30, 12288\ns_mul_i32 s41, s31, 36864\ns_add_u32 s45, s45, s41\ns_add_u32 s45, s45, {U_OFF}")
    e(f"s_mul_i32 s47, s28, {16*st}\ns_add_u32 s47, s47, s43\ns_lshl_b32 s48, s28, 10\ns_and_b32 s41, s28, 3\ns_add_u32 s41, s41, 32\ns_mul_i32 s49, s41, {16*st}\ns_add_u32 s49, s49, s43\ns_lshl_b32 s50, s41, 10")
    steps=[(t,4*c+kk) for c in range(9) for kk in range(4) for t in range(3)]+[(t,k) for t in (3,4,5) for k in range(36)]
    slot={0:0,1:1,2:2,3:3,4:0,5:1}
    def frag_read(e,m):
        t,k=steps[m]; r=FR+4*(m%NR)
        if t<3: base,off=12,((k//4+3)%4)*12288+t*4096+(k%4)*1024
        elif t==3: base,off=13,k*1024
        elif t==4: base,off=14,k*1024
        else: base,off=12,T5+k*1024
        e(f"ds_read_b64_tr_b16 v[{r}:{r+1}], v{base} offset:{off}")
        e(f"ds_read_b64_tr_b16 v[{r+2}:{r+3}], v{base} offset:{off+256}")
    def xreads(e,c):
        for kk in range(4):
            r=XFR+4*(4*c+kk); e(f"ds_read_b128 v[{r}:{r+3}], v{8+kk} offset:{(c%2)*4096}", tag=('x',c))
    def tdma(t,ei):
        def f(e):
            base = T4 if t==4 else T5
            if ei<4: e(f"s_add_u32 s41, s47, {ei*128*st+t*64}\ns_add_u32 m0, s48, {base+ei*8192}")
            else:    e(f"s_add_u32 s41, s49, {t*64}\ns_add_u32 m0, s50, {base}")
            e("buffer_load_dwordx4 v4, s[20:23], s41 offen lds", tag='T')
        return f
    def epi(t):
        a=ACC+16*slot[t]; L=[]
        for half in range(2):
            P=16+4*((2*t+half)%2)
            if H:
                for pp in range(2):
                    x=[a+8*half+4*pp+u for u in range(4)]; tt=[24+4*pp+u for u in range(4)]
                    L+=[f"v_mul_f32 v{tt[u]}, s46, v{x[u]}" for u in range(4)]
                    L+=[f"v_exp_f32 v{tt[u]}, v{tt[u]}" for u in range(4)]
                    L+=[f"v_fma_f32 v{tt[u]}, v{tt[u]}, v6, v6" for u in range(4)]
                    L+=[f"v_rcp_f32 v{tt[u]}, v{tt[u]}" for u in range(4)]
                    L+=[f"v_mul_f32 v{tt[u]}, v{x[u]}, v{tt[u]}" for u in range(4)]
                    L+=[f"v_cvt_pk_bf16_f32 v{P+2*pp+u}, v{tt[2*u]}, v{tt[2*u+1]}" for u in range(2)]
                def stf(e,P=P,half=half):
                    if half==0: e(f"s_add_u32 s51, s45, {t*12288}")
                    e(f"buffer_store_dwordx4 v[{P}:{P+3}], v15, s[24:27], s51 offen offset:{half*1024} {opt.get('hsc','sc1').replace('-','')}", tag=('H',t))
                L.append(stf)
            else:
                for p in range(4): L.append(f"v_cvt_pk_bf16_f32 v{P+p}, v{a+8*half+2*p}, v{a+8*half+2*p+1}")
                L.append(f"s_add_u32 s51, s45, {t*2048}\nbuffer_store_dwordx4 v[{P}:{P+3}], v15, s[24:27], s51 offen offset:{half*1024} sc1")
        return L
    def flag(t):
        def f(e):
            e.wait_vm_tag(('H',t))
            e(f"buffer_store_dwordx2 v[{NV}:{NV+1}], v8, s[24:27], s52 offen offset:{t*48} sc1")
            if opt.get('rpf',1): e(f"s_add_u32 s41, s45, {t*12288}\nbuffer_load_dword v13, v9, s[24:27], s41 offen")
        return f
    fill={m:[] for m in range(len(steps)+1)}
    for c in range(2,9):
        gp=[int(x) for x in str(opt.get('gp','112233'))]
        for j,f in enumerate(group(c)): fill[max(12*(c-2)-3+gp[j],0)].append(f)
    for j,f in enumerate([tdma(t,ei) for t in (4,5) for ei in range(5)]): fill[98+j].append(f)
    fill[max(opt.get('cpb',11),0)]+=pfB
    for c in range(9 if not opt.get('nodot',0) else 0):
        b=12*c
        for kk in range(4): fill[b+kk//2].append(f"ds_read_b128 v[{16+4*kk}:{19+4*kk}], v7 offset:{32*(4*c+kk)}")
        for kk in range(4):
            k=4*c+kk; xr=XFR+4*k
            fill[b+3+2*kk].append(f"v_mfma_f32_16x16x32_bf16 v[104:107], v[{16+4*kk}:{19+4*kk}], v[{xr}:{xr+3}], {'v[104:107]' if k else '0'}")
    fill[85].append(lambda e: nonce_issue(e,0))
    fill[96].append(f"v_cmp_eq_u32 vcc, 0, v1\nv_mov_b32 v9, {hex(OOB)}\nv_cndmask_b32 v8, v9, v0, vcc\nv_cmp_gt_u32 vcc, 16, v1\nv_lshlrev_b32 v10, 7, v1\nv_cndmask_b32 v9, v9, v10, vcc")
    zf=["v_mov_b32 v5, v104"]
    if H: zf+=[f"v_mul_f32 v5, {hex(f32bits(LOG2E))}, v5","v_exp_f32 v5, v5","v_add_f32 v5, 1.0, v5",f"v_min_f32 v6, {hex(f32bits(1e38))}, v5"]
    else:
        zf+=[f"v_mul_f32 v5, {hex(f32bits(-LOG2E))}, v5","v_exp_f32 v5, v5","v_add_f32 v5, 1.0, v5","v_rcp_f32 v6, v5",
             "v_bfe_u32 v10, v1, 2, 1\nv_lshlrev_b32 v10, 6, v10\nv_bfe_u32 v11, v1, 3, 2\nv_lshl_add_u32 v10, v11, 4, v10\nv_and_b32 v11, 3, v1\nv_lshl_add_u32 v10, v11, 2, v10\nv_lshrrev_b32 v11, 5, v1\nv_lshl_add_u32 v10, v11, 30, v10",
             f"s_lshl_b32 s41, s31, 7\ns_add_u32 s41, s41, {G_OFF}\nbuffer_store_dword v6, v10, s[24:27], s41 offen sc1"]
    fill[107]+=zf[:1]; fill[108]+=zf[1:]
    fill[108].append(lambda e: nonce_check(e,0))
    E0=opt.get('e0',109); E1=opt.get('e1',216)
    ops=[o for t in range(5) for o in epi(t)]
    pos=spread(len(ops),E0,E1)
    for o,p in zip(ops,pos): fill[p].append(o)
    FORK=180
    late=[]
    if H:
        FD=opt.get('fd',30); n=len(ops)//5
        for t in range(5):
            p=pos[(t+1)*n-1]+FD
            if p<216: fill[p].append(flag(t))
            else: late.append(t)
        late.append(5)
        def pfw(e):
            srd(e,12,96,4608*1152)
            pcptr(e,16,"GTR",""); e(f"s_mov_b32 s18, {576*1152}\ns_mov_b32 s19, 0x20000")
            if opt.get('pw2',1):
                e(f"s_lshl_b32 s41, s54, 3\ns_add_u32 s41, s41, s28\ns_mul_i32 s42, s41, 6912\ns_mul_i32 s44, s55, {1152*1152}\ns_add_u32 s42, s42, s44\nv_lshlrev_b32 v11, 7, v1")
                e("v_add_u32 v10, s42, v11\nbuffer_load_dword v10, v10, s[12:15], 0 offen")
                e(f"s_min_u32 s41, s41, 20\ns_lshl_b32 s41, s41, 13\ns_mul_i32 s44, s55, {144*1152}\ns_add_u32 s41, s41, s44\nv_add_u32 v11, s41, v11\nbuffer_load_dword v11, v11, s[16:19], 0 offen")
        fill[opt.get('pwp',112)].append(pfw)
    def run(e, lo, hi, fl):
        for m in range(lo,hi):
            t,k=steps[m]; mr=m+RA
            if mr<108 and mr%12==0:
                c=mr//12; e.wait_vm_tag(('G',c)); e("s_barrier"); xreads(e,c)
            if m==97: e("s_barrier")
            if mr==144: e.wait_vm_tag('T'); e("s_barrier")
            if m in (36,72,108,144,180): ts(e,{36:2,72:3,108:4,144:5,180:6}[m])
            if mr<len(steps): frag_read(e,mr)
            a=ACC+16*slot[t]; r=FR+4*(m%NR); xr=XFR+4*k
            cin = f"v[{a}:{a+15}]" if k>0 else "0"
            if H: e(f"v_mfma_f32_32x32x16_bf16 v[{a}:{a+15}], v[{r}:{r+3}], v[{xr}:{xr+3}], {cin}")
            else: e(f"v_mfma_f32_32x32x16_bf16 v[{a}:{a+15}], v[{xr}:{xr+3}], v[{r}:{r+3}], {cin}")
            for f in fill[m]+fl.get(m,[]):
                if callable(f): f(e)
                else: e(f)
    e.wait_vm_tag(('G',0)); e("s_barrier"); ts(e,1); xreads(e,0)
    for m in range(RA): frag_read(e,m)
    if not H:
        run(e,0,216,{})
        ts(e,7)
        for o in epi(5): e(o)
        e("s_waitcnt vmcnt(0)\ns_barrier")
        e(f"s_mul_i32 s41, s30, 64\ns_lshl_b32 s42, s29, 3\ns_add_u32 s41, s41, s42\ns_add_u32 s41, s41, {UF}")
        e("s_cmp_lg_u32 s28, 0\ns_cbranch_scc1 U_NOFLAG")
        e(f"buffer_store_dwordx2 v[{NV}:{NV+1}], v8, s[24:27], s41 offen sc1")
        e.label("U_NOFLAG")
        ts.end(e,8); e("s_endpgm")
        return [e]
    run(e,0,FORK,{})
    e("s_barrier")
    e("s_cmp_ge_u32 s28, 4\ns_cbranch_scc1 G2_LOAD")
    el=e.fork(); el.label("G2_LOAD")
    def epi5(e):
        for o in epi(5):
            if callable(o): o(e)
            else: e(o)
    g2_compute(e,opt,lambda: (run(e,FORK,216,{}),ts(e,7),epi5(e)),[flag(t) for t in late])
    g2_loader(el,opt,lambda fl: run(el,FORK,216,fl),lambda: epi5(el),{t:flag(t) for t in late})
    return [e,el]

TSZ=4096; SL=40960; NCH=21
def g2_ids(e):
    e("s_and_b32 s29, s3, 1\ns_lshl_b32 s29, s29, 3\ns_and_b32 s42, s54, 7\ns_add_u32 s29, s29, s42\ns_lshr_b32 s30, s54, 3")
def g2_compute(e,opt,finish_g1,lateflags):
    ts=opt['TS']
    finish_g1()
    g2_ids(e)
    B0=32; HB=36; ZB=40
    e("v_lshrrev_b32 v5, 5, v1\nv_lshlrev_b32 v5, 8, v5\nv_bfe_u32 v6, v1, 2, 2\nv_lshlrev_b32 v6, 6, v6\nv_add_u32 v5, v5, v6")
    e(f"v_and_b32 v6, 1, v1\nv_lshlrev_b32 v6, 5, v6\nv_add_u32 v5, v5, v6\nv_bfe_u32 v6, v1, 4, 1\nv_lshlrev_b32 v6, 4, v6\nv_add_u32 v5, v5, v6\nv_bfe_u32 v6, v1, 1, 1\nv_lshlrev_b32 v6, 3, v6\nv_add_u32 v{B0}, v5, v6")
    e(f"s_lshl_b32 s42, s28, 12\ns_add_u32 s42, s42, {6*TSZ}\nv_add_u32 v{HB}, s42, v15\nv_add_u32 v{ZB}, s42, v{B0}")
    for s in range(1,4): e(f"v_add_u32 v{B0+s}, {s*SL}, v{B0}\nv_add_u32 v{HB+s}, {s*SL}, v{HB}\nv_add_u32 v{ZB+s}, {s*SL}, v{ZB}")
    AC=160; F2=64; HFr=16; RA2=opt.get('ra2',6); NR2=RA2+1
    steps=[(n,t) for n in range(81) for t in range(6)]
    def frag_read(m):
        n,t=steps[m]; q=(n//4+1)%4; o=(n%4)*1024; r=F2+4*(m%NR2)
        if t==0:
            hr=HFr+4*(n%2)
            if n<72: e(f"ds_read_b128 v[{hr}:{hr+3}], v{HB+q} offset:{o}")
            else: e(f"ds_read_b64_tr_b16 v[{hr}:{hr+1}], v{ZB+q} offset:{o}\nds_read_b64_tr_b16 v[{hr+2}:{hr+3}], v{ZB+q} offset:{o+512}")
        e(f"ds_read_b64_tr_b16 v[{r}:{r+1}], v{B0+q} offset:{o+t*TSZ}")
        e(f"ds_read_b64_tr_b16 v[{r+2}:{r+3}], v{B0+q} offset:{o+t*TSZ+512}")
    def xsetup(e):
        e("s_mul_i32 s44, s29, 3\ns_add_u32 s44, s44, s30")
        e(f"s_mul_i32 s45, s44, {16*12288}\ns_mul_i32 s42, s28, 3072\ns_add_u32 s45, s45, s42\ns_add_u32 s45, s45, {P_OFF}\ns_mul_i32 s42, s55, {4*12288}\ns_add_u32 s46, s45, s42\ns_mul_i32 s42, s55, 12288\ns_add_u32 s45, s45, s42")
        e(f"s_lshl_b32 s47, s44, 2\ns_add_u32 s47, s47, s28\ns_lshl_b32 s47, s47, 7\ns_add_u32 s47, s47, {XF}\ns_lshl_b32 s42, s55, 3\ns_add_u32 s49, s47, s42")
        e("s_lshl_b32 s48, s29, 2\ns_add_u32 s48, s48, s28\ns_mul_i32 s48, s48, 1152\ns_mul_i32 s42, s30, 384\ns_add_u32 s48, s48, s42")
        e("v_and_b32 v5, 31, v1\ns_mov_b32 s42, 73728\nv_mul_lo_u32 v7, v5, s42\nv_lshrrev_b32 v6, 5, v1\nv_lshl_add_u32 v7, v6, 5, v7")
        e("v_min_u32 v5, 2, v1\nv_cmp_le_u32 vcc, s55, v5\nv_addc_co_u32 v5, vcc, 0, v5, vcc\nv_lshlrev_b32 v5, 3, v5")
        srd(e,20,98,2048*1152)
    fl={}
    for i,f in enumerate(lateflags): fl[opt.get('lf0',24)+i*opt.get('lfd',36)]=f
    fl[200]=xsetup
    e("s_barrier"); ts(e,8)
    for m in range(RA2): frag_read(m)
    for m,(n,t) in enumerate(steps):
        mr=m+RA2
        if m in (144,288,432): ts(e,{144:9,288:10,432:11}[m])
        if mr<len(steps):
            if mr%24==0: e("s_barrier")
            frag_read(mr)
        a=AC+16*t; r=F2+4*(m%NR2); hr=HFr+4*(n%2)
        cin=f"v[{a}:{a+15}]" if n>0 else "0"
        e(f"v_mfma_f32_32x32x16_bf16 v[{a}:{a+15}], v[{r}:{r+3}], v[{hr}:{hr+3}], {cin}")
        if m in fl: fl[m](e)
    ts(e,12)
    e("s_cmp_eq_u32 s55, 1\ns_cbranch_scc1 XV1\ns_cmp_eq_u32 s55, 2\ns_cbranch_scc1 XV2\ns_cmp_eq_u32 s55, 3\ns_cbranch_scc1 XV3")
    txt=[]
    for ks in range(4):
        x=e.fork()
        if ks: x.label(f"XV{ks}")
        i=0
        for u in range(12):
            d=u//3
            if d==ks: continue
            a=AC+8*u; P=64+4*i; i+=1
            for p in range(4): x(f"v_cvt_pk_bf16_f32 v{P+p}, v{a+2*p}, v{a+2*p+1}")
            if u%3==0: x(f"s_add_u32 s42, s45, {d*4*12288}")
            x(f"buffer_store_dwordx4 v[{P}:{P+3}], v15, s[24:27], s42 offen offset:{(u%3)*1024} sc1")
        x("s_waitcnt vmcnt(0)")
        x(f"buffer_store_dwordx2 v[{NV}:{NV+1}], v8, s[24:27], s49 offen sc1")
        check_spin(x,10,5,"s47",0)
        i=0
        for s in range(4):
            if s==ks: continue
            x(f"s_add_u32 s42, s46, {s*12288}")
            for u in range(3):
                P=112+4*(3*i+u); x(f"buffer_load_dwordx4 v[{P}:{P+3}], v15, s[24:27], s42 offen offset:{u*1024} sc1")
            i+=1
        for i in range(3):
            for u in range(3):
                a=AC+8*(3*ks+u); P=112+4*(3*i+u)
                for p in range(4):
                    x(f"v_lshlrev_b32 v{16+2*p}, 16, v{P+p}\nv_and_b32 v{17+2*p}, 0xffff0000, v{P+p}")
                for p in range(8): x(f"v_add_f32 v{a+p}, v{a+p}, v{16+p}")
                if i==2:
                    Q=64+4*u; U=3*ks+u
                    for p in range(4): x(f"v_cvt_pk_bf16_f32 v{Q+p}, v{a+2*p}, v{a+2*p+1}")
                    x(f"buffer_store_dwordx4 v[{Q}:{Q+3}], v7, s[20:23], s48 offen offset:{(U//2)*64+(U%2)*16}")
        ts.end(x,13); x("s_endpgm")
        txt.append(x.text())
    e.raw('\n'.join(txt))
def g2_loader(e,opt,run_g1,epi5,lateflags):
    ts=opt['TS']
    def setup(e):
        g2_ids(e)
        e("s_sub_u32 s32, s28, 4")
        e("v_lshrrev_b32 v5, 2, v1\nv_and_b32 v0, 3, v1\nv_lshlrev_b32 v0, 4, v0\nv_mul_u32_u24 v4, 1152, v5\nv_add_u32 v4, v4, v0\nv_and_b32 v0, 1, v1\nv_lshlrev_b32 v0, 10, v0\nv_lshl_add_u32 v7, v5, 12, v0\nv_bfe_u32 v0, v1, 1, 1\nv_lshl_add_u32 v7, v0, 4, v7")
        e("v_min_u32 v0, 5, v1\nv_lshlrev_b32 v0, 3, v0\nv_min_u32 v5, 36, v1\nv_lshlrev_b32 v5, 3, v5")
        e("s_lshl_b32 s33, s29, 2\ns_add_u32 s33, s33, s32")
        e(f"s_lshl_b32 s39, s33, 2\ns_add_u32 s39, s39, s55\ns_lshl_b32 s39, s39, 9\ns_add_u32 s39, s39, {HF}")
        e(f"s_and_b32 s40, s33, 31\ns_lshl_b32 s40, s40, 5\ns_lshr_b32 s42, s33, 5\ns_lshl_b32 s42, s42, 11\ns_add_u32 s40, s40, s42\ns_mul_i32 s42, s55, {144*4096}\ns_add_u32 s40, s40, s42\ns_add_u32 s40, s40, {ZT_OFF}")
        e("s_mul_i32 s33, s33, 294912\ns_mul_i32 s42, s55, 73728\ns_add_u32 s33, s33, s42")
        e(f"s_lshl_b32 s34, s32, 12\ns_add_u32 s34, s34, {6*TSZ}\ns_lshl_b32 s36, s32, 10")
        e(f"s_lshr_b32 s42, s32, 1\ns_mul_i32 s35, s42, {192*1152}\ns_and_b32 s42, s32, 1\ns_mul_i32 s42, s42, {16*1152}\ns_add_u32 s35, s35, s42\ns_mul_i32 s42, s55, {1152*1152}\ns_add_u32 s35, s35, s42\ns_mul_i32 s43, s30, 384\ns_add_u32 s35, s35, s43")
        e(f"s_mul_i32 s44, s55, {144*1152}\ns_add_u32 s44, s44, s43\ns_mul_i32 s42, s32, {16*1152}\ns_add_u32 s43, s44, s42")
        e(f"s_mov_b32 s47, {ZF}")
    def wpart(c):
        so=((c+1)%4)*SL; L=[]
        if c<18: sb,lit,R="s35",(384*(c%3)+32*(c//3))*1152,12
        else: sb,lit,R="s43",64*(c-18)*1152,16
        if c<20:
            for t in range(6):
                def f(e,t=t):
                    if t==0: e(f"s_add_u32 s37, {sb}, {lit}")
                    e(f"s_add_u32 m0, s36, {(so+t*TSZ-t*64)&0xffffffff}")
                    e(f"buffer_load_dwordx4 v4, s[{R}:{R+3}], s37 offen offset:{t*64} lds", tag=c)
                L.append(f)
        else:
            def f(e):
                for z in range(2):
                    if z==0: e("s_mov_b32 s42, s32")
                    else: e("s_add_u32 s42, s32, 4\ns_min_u32 s42, s42, 5")
                    e(f"s_lshl_b32 s37, s42, 6\ns_add_u32 s37, s37, s44\ns_add_u32 s37, s37, {128*1152}\ns_lshl_b32 s42, s42, 12\ns_add_u32 m0, s42, {so}")
                    e("buffer_load_dwordx4 v4, s[16:19], s37 offen lds", tag=c)
            L.append(f)
        return L
    hld=opt.get('hld','sc1')
    def hpart(c,e):
        so=((c+1)%4)*SL
        if c<18:
            e(f"s_add_u32 s38, s33, {c*4096}\ns_add_u32 m0, s34, {so}")
            for kk in range(4): e(f"buffer_load_dwordx4 v15, s[24:27], s38 offen offset:{kk*1024} {hld} lds", tag=c)
        else:
            for kk in range(4 if c<20 else 1):
                e(f"s_add_u32 s38, s40, {(64*(c-18)+16*kk)*4096}\ns_add_u32 m0, s34, {so+kk*1024}")
                e(f"buffer_load_dwordx4 v7, s[24:27], s38 offen {hld} lds", tag=c)
    fl={180:[setup]}
    W=[f for c in range(3) for f in wpart(c)]
    for i,f in enumerate(W): fl.setdefault(181+i,[]).append(f)
    fl.setdefault(opt.get('p0i',190),[]).append(lambda e: poll_issue(e,10,0,"s39",0))
    PC=opt.get('p0c',208)
    fl.setdefault(PC,[]).append(lambda e: check_spin(e,10,0,"s39",0,issue=False))
    for c in range(3): fl.setdefault(min(PC+2*c,215),[]).append(lambda e,c=c: hpart(c,e))
    fl.setdefault(215,[]).append(lambda e: poll_issue(e,10,0,"s39",48))
    run_g1(fl); ts(e,7); epi5()
    late=dict(lateflags)
    for c in range(NCH):
        e.wait_vm_tag(c); e("s_barrier")
        if c in (0,6,12,18): ts(e,{0:8,6:9,12:10,18:11}[c])
        n=c+2
        if c>=1 and n<NCH:
            if n<18 and n%3==0: check_spin(e,10,0,"s39",(n//3)*48,issue=False)
            if n==18: check_spin(e,10,5,"s47",0,issue=False)
            if n<15 and n%3==2: poll_issue(e,10,0,"s39",(n//3+1)*48)
            if n==17: poll_issue(e,10,5,"s47",0)
            for f in wpart(n): f(e)
            hpart(n,e)
        if c>=1 and late and c%2==1:
            t=min(late); late.pop(t)(e)
    assert not late
    ts.end(e,12); e("s_endpgm")

def fft(e, opt):
    ts=opt['TS']
    C32=0;S32=2048;N32=4096;C64=6144;S64=14336;N64=22528;T1=30720;T2=47104; WL=65536
    e("s_load_dwordx4 s[44:47], s[0:1], 8")
    pcptr(e,12,"FFTTAB","")
    e(f"s_mov_b32 s14, {64*1024}\ns_mov_b32 s15, 0x20000")
    e("v_and_b32 v1, 63, v0\nv_lshlrev_b32 v9, 4, v1\ns_lshl_b32 s42, s28, 13\nv_add_u32 v7, s42, v9\nv_mov_b32 v0, 0")
    e("s_lshl_b32 m0, s28, 13")
    for i in range(4): e(f"buffer_load_dwordx4 v7, s[12:15], 0 offen offset:{i*1024} lds", tag='T')
    e("s_movk_i32 s42, 0x1000\ns_add_u32 m0, m0, s42")
    for i in range(4): e(f"buffer_load_dwordx4 v7, s[12:15], s42 offen offset:{i*1024} lds", tag='T')
    nonce_issue(e,0)
    srd(e,16,44,2048*578); srd(e,20,46,2048*578)
    e(f"s_lshl_b32 s30, s29, 3\ns_min_u32 s31, s30, 281\ns_add_u32 s30, s30, s28\ns_sub_u32 s34, s30, s31\ns_lshl_b32 s31, s31, 1\ns_mul_i32 s42, s28, {256*578}\ns_add_u32 s31, s31, s42")
    e(f"v_mul_u32_u24 v7, 578, v1\nv_add_u32 v7, s31, v7\ns_lshl_b32 s32, s28, 12\ns_add_u32 s32, s32, {WL}")
    for ri in range(2):
        for b in range(4 if not opt.get('now',0) else 0):
            e(f"s_add_u32 m0, s32, {ri*32768+b*1024}\ns_mov_b32 s42, {b*64*578}")
            e(f"buffer_load_dwordx4 v7, s[{16+4*ri}:{19+4*ri}], s42 offen lds", tag='T')
    nonce_check(e,0)
    PA=96; PB=64; WR=32; A1=128; A2=192; GL=131072
    def pk(base,T,ri,t): r=base+16*T+8*ri+4*t; return f"v[{r}:{r+3}]"
    def ac(base,T,ri): r=base+32*T+16*ri; return f"v[{r}:{r+15}]"
    e(f"v_and_b32 v5, 31, v1\nv_lshrrev_b32 v6, 5, v1\nv_lshlrev_b32 v7, 4, v5\nv_lshl_add_u32 v7, v6, 11, v7\ns_lshl_b32 s34, s34, 1\ns_add_u32 s34, s34, {WL}\nv_add_u32 v7, s34, v7")
    e.wait_all(); e("s_barrier")
    for mt in range(2):
        for ri in range(2):
            for r in range(16):
                e(f"ds_read_u16{'_d16_hi' if r&1 else ''} v{A1+32*mt+16*ri+r}, v7 offset:{ri*32768+mt*16384+(r//4)*4096+(r%4)*512}")
    for mt in range(2):
        for ri in range(2):
            for rp in range(8): e(f"v_or_b32 v{WR+16*mt+8*ri+rp}, v{A1+32*mt+16*ri+2*rp}, v{A1+32*mt+16*ri+2*rp+1}")
    e("v_lshrrev_b32 v8, 3, v1\nv_lshrrev_b32 v10, 1, v8\ns_and_b32 s42, s28, 1\ns_lshl_b32 s42, s42, 2\nv_add_u32 v10, s42, v10\nv_and_b32 v11, 7, v1\nv_xor_b32 v10, v10, v11\nv_lshlrev_b32 v10, 4, v10")
    e("v_lshl_add_u32 v12, v8, 7, v10\nv_mul_u32_u24 v8, 36864, v8\nv_add_u32 v8, v8, v10")
    e(f"s_lshr_b32 s42, s29, 2\ns_lshl_b32 s42, s42, 11\ns_and_b32 s35, s29, 3\ns_lshl_b32 s35, s35, 7\ns_add_u32 s35, s35, s42\ns_mul_i32 s42, s28, {8*36864}\ns_add_u32 s35, s35, s42\ns_add_u32 s35, s35, {U_OFF}\ns_add_u32 s36, s35, {9*2048}")
    e(f"s_lshl_b32 s32, s28, 10\ns_add_u32 s39, s32, {G_OFF}")
    e(f"v_bfe_u32 v15, v1, 1, 3\nv_xor_b32 v13, s28, v15\nv_lshlrev_b32 v13, 4, v13\nv_lshl_add_u32 v13, v5, 7, v13\nv_lshl_add_u32 v13, v6, 13, v13\nv_add_u32 v13, {WL}, v13")
    e(f"v_lshlrev_b32 v4, 2, v6\nv_xor_b32 v4, v4, v15\nv_lshlrev_b32 v4, 4, v4\nv_lshl_add_u32 v4, v5, 7, v4\nv_add_u32 v4, {GL}, v4")
    e(f"s_lshl_b32 s31, s30, 12\ns_add_u32 s33, s31, {288*4096}\ns_cmp_eq_u32 s30, 0\ns_cselect_b32 s33, {hex(OOB)}, s33\ns_cmp_eq_u32 s30, 288\ns_cselect_b32 s33, {hex(OOB)}, s33")
    e(f"s_add_u32 s37, s31, {ZT_OFF}\ns_mov_b32 s38, {ZT_OFF}")
    e("v_lshlrev_b32 v5, 5, v5\nv_lshl_add_u32 v5, v6, 4, v5\nv_add_u32 v6, s33, v5\nv_mov_b32 v0, v9")
    e(f"v_min_u32 v7, 23, v1\nv_lshlrev_b32 v7, 3, v7\ns_mov_b32 s47, {UF}")
    e.wait_all()
    e("s_cmp_lg_u32 s28, 0\ns_cbranch_scc1 F_NOPOLL")
    check_spin(e,10,7,"s47",0)
    e.label("F_NOPOLL")
    ts(e,1); e("s_barrier")
    for ri in range(2):
        for hf in range(2):
            for h in range(2):
                im=hf*1024+h*512
                e(f"s_add_u32 m0, s32, {WL+((ri*2+hf)*2+h)*8192-im}")
                e(f"buffer_load_dwordx4 v8, s[24:27], s{35+ri} offen offset:{im} sc1 lds")
    e(f"s_add_u32 m0, s32, {GL}\nbuffer_load_dwordx4 v12, s[24:27], s39 offen sc1 lds")
    e.wait_all(); e("s_barrier")
    e("s_cmp_gt_u32 s30, 288\ns_cbranch_scc1 M_END")
    for T in range(2):
        for t in range(2):
            for ri in range(2): e(f"ds_read_b128 {pk(PB,T,ri,t)}, v13 offset:{ri*32768+t*16384+T*4096}")
    e(f"s_cmp_lg_u32 s33, {hex(OOB)}\ns_cbranch_scc1 F_NOZ")
    e.raw("s_waitcnt lgkmcnt(0)")
    for T in range(2):
        for r in range(8): e.raw(f" v_mov_b32 v{PB+16*T+8+r}, 0")
    e.raw("s_nop 1"); e.label("F_NOZ")
    def cr(i): return f"v[{8+4*i}:{11+4*i}]"
    def mf(D,A,B,first): e(f"v_mfma_f32_32x32x16_bf16 {D}, {A}, {B}, {'0' if first else D}")
    def ld32():
        for i,o in enumerate([C32,C32+1024,S32,S32+1024,N32,N32+1024]): e(f"ds_read_b128 {cr(i)}, v0 offset:{o}")
    def twid(src,dst,tmp,tab):
        def rd(i): e(f"ds_read_b128 {cr(i%6)}, v0 offset:{tab+i*1024}")
        for i in range(5): rd(i)
        for i in range(16):
            T,rp=i//8,i%8
            if i+5<16: rd(i+5)
            w=8+4*(i%6); ar=src+32*T+2*rp; ai=ar+16; tt=tmp+4*(i%2)
            for u in range(2):
                e(f"v_mul_f32 v{tt+u}, v{ar+u}, v{w+2*u}\nv_mul_f32 v{tt+2+u}, v{ai+u}, v{w+2*u}")
            for u in range(2):
                e(f"v_fma_f32 v{tt+u}, -v{ai+u}, v{w+2*u+1}, v{tt+u}\nv_fma_f32 v{tt+2+u}, v{ar+u}, v{w+2*u+1}, v{tt+2+u}")
            e(f"v_cvt_pk_bf16_f32 v{dst+16*T+rp}, v{tt}, v{tt+1}\nv_cvt_pk_bf16_f32 v{dst+16*T+8+rp}, v{tt+2}, v{tt+3}")
    ld32()
    for T in range(2):
        for t in range(2):
            mf(ac(A1,T,0),pk(PB,T,0,t),cr(t),t==0); mf(ac(A1,T,1),pk(PB,T,1,t),cr(t),t==0)
            mf(ac(A1,T,0),pk(PB,T,1,t),cr(2+t),False); mf(ac(A1,T,1),pk(PB,T,0,t),cr(4+t),False)
    ts(e,2); twid(A1,PA,A2,T1); ts(e,3)
    def big(kind):
        seq=[(o,ks) for o in range(2) for ks in range(4)]
        def rd(i):
            o,ks=seq[i]
            for z,b in enumerate((C64,S64,N64)): e(f"ds_read_b128 {cr(3*(i%2)+z)}, v0 offset:{b+(4*o+ks)*1024}")
        rd(0)
        for i,(o,ks) in enumerate(seq):
            c,s_,n=[cr(3*(i%2)+z) for z in range(3)]
            if kind==2:
                dr,di=pk(PA,ks//2,0,ks%2),pk(PA,ks//2,1,ks%2)
                mf(ac(A2,o,0),c,dr,ks==0)
                if i+1<8: rd(i+1)
                mf(ac(A2,o,1),c,di,ks==0); mf(ac(A2,o,0),s_,di,False); mf(ac(A2,o,1),n,dr,False)
            else:
                dr,di=pk(PB,ks//2,0,ks%2),pk(PB,ks//2,1,ks%2)
                mf(ac(A1,o,0),dr,c,ks==0)
                if i+1<8: rd(i+1)
                mf(ac(A1,o,1),di,c,ks==0); mf(ac(A1,o,0),di,n,False); mf(ac(A1,o,1),dr,s_,False)
    big(2); ts(e,4)
    for i in range(16):
        mt,rp=i//8,i%8
        ar=A2+32*mt+2*rp; ai=ar+16; wr=WR+16*mt+rp; wi=wr+8; tt=A1+8*(i%2)
        e(f"v_lshlrev_b32 v{tt+4}, 16, v{wr}\nv_and_b32 v{tt+5}, 0xffff0000, v{wr}\nv_lshlrev_b32 v{tt+6}, 16, v{wi}\nv_and_b32 v{tt+7}, 0xffff0000, v{wi}")
        for u in range(2): e(f"v_mul_f32 v{tt+u}, v{ar+u}, v{tt+4+u}\nv_mul_f32 v{tt+2+u}, v{ai+u}, v{tt+4+u}")
        for u in range(2): e(f"v_fma_f32 v{tt+u}, -v{ai+u}, v{tt+6+u}, v{tt+u}\nv_fma_f32 v{tt+2+u}, v{ar+u}, v{tt+6+u}, v{tt+2+u}")
        e(f"v_cvt_pk_bf16_f32 v{PB+16*mt+rp}, v{tt}, v{tt+1}\nv_cvt_pk_bf16_f32 v{PB+16*mt+8+rp}, v{tt+2}, v{tt+3}")
    GR=WR
    for q in range(4):
        if q: e(f"v_xor_b32 v7, {16*q}, v4")
        for T in range(2): e(f"ds_read_b128 v[{GR+16*T+4*q}:{GR+16*T+4*q+3}], v{7 if q else 4} offset:{T*4096}")
    ts(e,5); big(3); ts(e,6)
    twid(A1,PA,A2,T2); ts(e,7)
    ld32()
    for T in range(2):
        for t in range(2):
            mf(ac(A2,T,0),cr(t),pk(PA,T,0,t),t==0); mf(ac(A2,T,1),cr(t),pk(PA,T,1,t),t==0)
            mf(ac(A2,T,0),cr(4+t),pk(PA,T,1,t),False); mf(ac(A2,T,1),cr(2+t),pk(PA,T,0,t),False)
    for T in range(2):
        for ri in range(2):
            for q in range(2):
                a=A2+32*T+16*ri+8*q; P=PB+16*T+8*ri+4*q; g=GR+16*T+8*q
                for p in range(8): e(f"v_mul_f32 v{a+p}, v{a+p}, v{g+p}")
                for p in range(4): e(f"v_cvt_pk_bf16_f32 v{P+p}, v{a+2*p}, v{a+2*p+1}")
                if ri==0: e(f"buffer_store_dwordx4 v[{P}:{P+3}], v5, s[24:27], s37 offen offset:{T*2048+q*1024} sc1")
                else:     e(f"buffer_store_dwordx4 v[{P}:{P+3}], v6, s[24:27], s38 offen offset:{T*2048+q*1024} sc1")
    ts(e,8)
    e(f"v_cmp_eq_u32 vcc, 0, v1\nv_mov_b32 v9, {hex(OOB)}\nv_cndmask_b32 v8, v9, v1, vcc\ns_lshl_b32 s41, s29, 3\ns_add_u32 s41, s41, {ZF}")
    e("s_waitcnt vmcnt(0)\ns_barrier\ns_cmp_lg_u32 s28, 0\ns_cbranch_scc1 F_NOFLAG")
    e(f"buffer_store_dwordx2 v[{NV}:{NV+1}], v8, s[24:27], s41 offen sc1")
    e.label("F_NOFLAG")
    ts.end(e,9); e("s_endpgm")

def helper(e,opt):
    e("s_sub_u32 s30, s54, 27\ns_lshl_b32 s30, s30, 3\ns_add_u32 s30, s30, s28\nv_and_b32 v1, 63, v0")
    pcptr(e,16,"FTAB",""); e(f"s_mov_b32 s18, {576*1152}\ns_mov_b32 s19, 0x20000")
    e("s_lshl_b32 s31, s30, 6\nv_add_u32 v4, s31, v1\nv_lshlrev_b32 v5, 7, v4")
    e(f"s_mov_b32 s35, {opt.get('hc0',1)*64*1152}\nbuffer_load_dword v16, v5, s[16:19], s35 offen")
    e(f"v_add_u32 v5, {2560*128+opt.get('hc0',1)*64*1152}, v5\nbuffer_load_dword v17, v5, s[16:19], 0 offen")
def helper2(e,opt):
    srd(e,16,96,4608*1152)
    e(f"s_mul_i32 s35, s33, {1152*1152}")
    for z in range(5):
        e(f"v_add_u32 v5, {z*2560}, v4\nv_min_u32 v5, 10367, v5\nv_lshlrev_b32 v5, 7, v5\nbuffer_load_dword v{48+z}, v5, s[16:19], s35 offen")
    pcptr(e,16,"GTR",""); e(f"s_mov_b32 s18, {576*1152}\ns_mul_i32 s35, s33, {144*1152}")
    e("v_min_u32 v5, 1295, v4\nv_lshlrev_b32 v5, 7, v5\nbuffer_load_dword v56, v5, s[16:19], s35 offen")

def mega(name,opt):
    e=Em()
    e.raw(f".globl {name}\n.p2align 8\n.type {name},@function\n{name}:")
    e("s_cmp_ge_u32 s2, 256\ns_cbranch_scc1 M_END")
    ts=TS(opt.get('ts',0),0); opt['TS']=ts; ts.start(e)
    e("s_load_dwordx2 s[4:5], s[0:1], 0\ns_load_dwordx2 s[6:7], s[0:1], 32\ns_load_dwordx2 s[8:9], s[0:1], 72\ns_load_dwordx2 s[10:11], s[0:1], 48\ns_load_dwordx2 s[96:97], s[0:1], 40\ns_load_dwordx2 s[98:99], s[0:1], 56\ns_load_dwordx2 s[100:101], s[0:1], 64\ns_memrealtime s[56:57]")
    e("v_lshrrev_b32 v1, 6, v0\nv_readfirstlane_b32 s28, v1")
    e("s_and_b32 s3, s2, 7\ns_lshr_b32 s54, s2, 3")
    e("s_waitcnt lgkmcnt(0)")
    e("s_or_b32 s41, s2, s28\ns_cmp_lg_u32 s41, 0\ns_cbranch_scc1 M_NONONCE")
    e.raw("s_or_b32 s56, s56, 1\n v_mov_b32 v2, s56\n v_mov_b32 v3, s57\n v_mov_b32 v4, 0\n global_store_dwordx2 v4, v[2:3], s[100:101] sc1\n s_nop 1\nM_NONONCE:")
    srd(e,24,8,WS_SZ)
    e("s_cmp_ge_u32 s54, 27\ns_cbranch_scc1 M_FFT")
    ef=e.fork()
    srd(e,16,4,2048*1152); srd(e,12,10,1152)
    e("s_cmp_ge_u32 s54, 24\ns_cbranch_scc1 M_U")
    eu=e.fork()
    srd(e,20,6,576*9216)
    e("s_and_b32 s29, s3, 1\ns_lshl_b32 s29, s29, 2\ns_and_b32 s42, s54, 3\ns_add_u32 s29, s29, s42")
    e("s_lshr_b32 s30, s3, 1\ns_mul_i32 s30, s30, 6\ns_lshr_b32 s42, s54, 2\ns_add_u32 s30, s30, s42")
    L=g1(e,'h',opt)
    eu.label("M_U")
    pcptr(eu,20,"FTAB","")
    eu(f"s_mov_b32 s22, {576*1152}\ns_mov_b32 s23, 0x20000\ns_sub_u32 s30, s54, 24")
    eu("s_and_b32 s29, s3, 1\ns_lshl_b32 s29, s29, 2\ns_lshr_b32 s42, s3, 1\ns_add_u32 s29, s29, s42")
    L+=g1(eu,'u',opt)
    ef.label("M_FFT")
    ef("s_mul_i32 s29, s3, 5\ns_add_u32 s29, s29, s54\ns_sub_u32 s29, s29, 27")
    if opt.get('hp',1):
        helper(ef,opt)
        if opt.get('h2',0)==1: helper2(ef,opt)
    ef("s_cmp_ge_u32 s29, 37\ns_cbranch_scc1 M_END")
    fft(ef,opt)
    ef.label("M_END"); ef.raw("s_waitcnt vmcnt(0)\ns_endpgm")
    return '\n'.join(x.text() for x in L+[ef])
```

```python
from common import *
def big_tables():
    L=[]
    for k in range(576): L.append(f'.set CT{k}, {bf16bits(np.cos(2*np.pi*k/576) if k not in (144,432) else 0.0)}')
    L.append(r'''.altmacro
.macro EC i
.short CT\i
.endm
.p2align 8
FTAB:
.set dd,0
.rept 576
.set ix,0
.rept 289
EC %ix
.set ix,(ix+dd)%576
.endr
.set ix,(dd+144)%576
.rept 287
EC %ix
.set ix,(ix+dd)%576
.endr
.set dd,dd+1
.endr''')
    L.append(f'.set HALFP, {bf16bits(0.5)}\n.set HALFN, {bf16bits(-0.5)}')
    L.append(r'''.macro EG d c
.if \c == 0
.short HALFP
.elseif \c == 288
.if (\d & 1)
.short HALFN
.else
.short HALFP
.endif
.elseif \c < 288
EC %((\d*\c)%576)
.else
EC %((\d*(\c-288)+144)%576)
.endif
.endm
.p2align 8
GTAB:
.set dt,0
.rept 18
.set kk,0
.rept 36
.set ll,0
.rept 64
.set dv,32*dt+16*((ll>>2)&1)+4*((ll>>3)&3)+(ll&3)
.set cv,16*kk+8*(ll>>5)
.rept 8
EG %dv, %cv
.set cv,cv+1
.endr
.set ll,ll+1
.endr
.set kk,kk+1
.endr
.set dt,dt+1
.endr
.noaltmacro''')
    return '\n'.join(L)
def perm8(t,h,j): return 16*t+8*(j//4)+4*h+j%4
def cperm(r,h): return 8*(r//4)+4*h+r%4
def fft_tables():
    W=[]
    def frag(fn):
        for l in range(64):
            v=[bf16bits(fn(l%32,l//32,j)) for j in range(8)]
            for p in range(4): W.append(v[2*p]|(v[2*p+1]<<16))
    def cs(n,idx,kind):
        idx%=n; a=2*np.pi*idx/n
        c=np.cos(a); s=np.sin(a)
        if abs(c)<1e-12:c=0.0
        if abs(s)<1e-12:s=0.0
        return {'c':c,'s':s,'n':-s}[kind]+0.0
    for kind in 'csn':
        for t in range(2): frag(lambda n,h,j: cs(32,n*perm8(t,h,j),kind))
    for kind in 'csn':
        for mt in range(2):
            for ks in range(4): frag(lambda n,h,j: cs(64,(32*mt+n)*(32*(ks//2)+perm8(ks%2,h,j)),kind))
    sc=2.0/(576*2048)
    for which in range(2):
        for tile in range(2):
            for rp in range(8):
                for l in range(64):
                    for r in (2*rp,2*rp+1):
                        if which==0: k1=l%32; s2=32*tile+cperm(r,l//32); a=-2*np.pi*k1*s2/2048; m=1.0
                        else: s2=32*tile+l%32; k1=cperm(r,l//32); a=2*np.pi*k1*s2/2048; m=sc
                        W.append(f32bits(m*np.cos(a))); W.append(f32bits(m*np.sin(a)))
    assert len(W)==62*256
    L=['.p2align 8','FFTTAB:']
    for i in range(0,len(W),8): L.append('.long '+','.join(hex(x) for x in W[i:i+8]))
    return '\n'.join(L)
def big_tables_m():
    t=big_tables(); t=t[:t.index('.macro EG d c')]
    t+=r'''.p2align 8
GTR:
.rept 576
.short HALFP
.endr
.set cc,1
.rept 287
.set ix,0
.rept 576
EC %ix
.set ix,(ix+cc)%576
.endr
.set cc,cc+1
.endr
.rept 288
.short HALFP
.short HALFN
.endr
.set cc,1
.rept 287
.set ix,144
.rept 576
EC %ix
.set ix,(ix+cc)%576
.endr
.set cc,cc+1
.endr
.noaltmacro'''
    return t
```

```python
import sys
sys.path.insert(0,'gen')
from common import *
import mega, tables
opt={}
for a in sys.argv[2:]:
    k,v=a.split('=',1)
    try: v=int(v)
    except: pass
    opt[k]=v
hdr=open('cdna_kernels/'+NAME+'.s.ref').read().split('\n')
hdr=[l for l in hdr if l.startswith(';') and 'offset' in l or l.startswith('; Kernarg')]
K=NAME+"_kernel"
L=list(hdr)
L.append(f"; @launch grid=(256,1,1) block=(512,1,1) lds={mega.LDS}")
L.append('.amdgcn_target "amdgcn-amd-amdhsa--gfx950"\n.text')
L.append(mega.mega(K,opt))
L.append('.section .rodata,"a"')
L.append('.p2align 6\n'+kdesc(K,sgpr=102))
L.append(tables.fft_tables()); L.append(tables.big_tables_o() if opt.get('ox',0) else tables.big_tables_m())
open(sys.argv[1],'w').write('\n'.join(L)+'\n')
```

```python
from common import *
LDS=163840
WS_SZ=0x3000000
FL=0x2800000; HF=FL; UF=FL+0x20000; ZF=FL+0x20400; XF=FL+0x21000
OOB=0x7f000000
RAO=73728; XR=98304; PC=90112
XFR=112; ACC=48; FR=32; RA=3; NR=4
LOG2E=1.4426950408889634
NV=2
uid=[0]
def check_spin(e, d, vaddr, soff, imm, issue=True):
    uid[0]+=1; u=uid[0]
    ld=f"buffer_load_dwordx2 v[{d}:{d+1}], v{vaddr}, s[24:27], {soff} offen offset:{imm} sc1"
    if issue: e(ld)
    e(f"v_cmp_eq_u64 vcc, v[{d}:{d+1}], v[{NV}:{NV+1}]")
    e(f"s_cmp_eq_u64 vcc, -1\ns_cbranch_scc1 POK{u}")
    e.raw(f"s_mov_b32 s53, 0\nPSP{u}:\n s_sleep 2\n {ld}\n s_add_u32 s53, s53, 1\n s_waitcnt vmcnt(0)\n v_cmp_eq_u64 vcc, v[{d}:{d+1}], v[{NV}:{NV+1}]\n s_cmp_ge_u32 s53, 0x40000\n s_cbranch_scc1 POK{u}\n s_nop 1\n s_cmp_eq_u64 vcc, -1\n s_cbranch_scc0 PSP{u}\nPOK{u}:")
def poll_issue(e, d, vaddr, soff, imm, tag=None):
    e(f"buffer_load_dwordx2 v[{d}:{d+1}], v{vaddr}, s[24:27], {soff} offen offset:{imm} sc1", tag=tag)
def nonce_issue(e, vz):
    e(f"global_load_dwordx2 v[{NV}:{NV+1}], v{vz}, s[100:101] sc1")
def nonce_check(e, vz):
    uid[0]+=1; u=uid[0]
    e(f"v_cmp_ne_u64 vcc, 0, v[{NV}:{NV+1}]")
    e(f"s_cmp_eq_u64 vcc, -1\ns_cbranch_scc1 NOK{u}")
    e.raw(f"s_mov_b32 s53, 0\nNSP{u}:\n s_sleep 2\n global_load_dwordx2 v[{NV}:{NV+1}], v{vz}, s[100:101] sc1\n s_add_u32 s53, s53, 1\n s_waitcnt vmcnt(0)\n v_cmp_ne_u64 vcc, 0, v[{NV}:{NV+1}]\n s_cmp_ge_u32 s53, 0x40000\n s_cbranch_scc1 NOK{u}\n s_nop 1\n s_cmp_eq_u64 vcc, -1\n s_cbranch_scc0 NSP{u}\nNOK{u}:")

def g1(e, mode, opt):
    ts=opt['TS']; H=(mode=='h')
    st = 9216 if H else 1152
    e("s_lshl_b32 s31, s29, 3\ns_add_u32 s31, s31, s28")
    e("s_mul_i32 s32, s31, 1152")
    for q in (1,2,3): e(f"s_add_u32 s{32+q}, s32, {q*8*64*1152}")
    e(f"s_lshl_b32 s36, s28, 13\ns_add_u32 s36, s36, {XR}")
    e("s_mul_i32 s43, s30, 384")
    e(f"s_and_b32 s41, s28, 3\ns_mul_i32 s37, s41, {16*st}\ns_lshr_b32 s42, s28, 2\ns_lshl_b32 s44, s42, 7\ns_add_u32 s37, s37, s44\ns_add_u32 s37, s37, s43")
    e(f"s_lshl_b32 s41, s41, 11\ns_cmp_eq_u32 s42, 0\ns_cselect_b32 s38, {RAO+8192}, 0\ns_cselect_b32 s40, 24576, 0\ns_add_u32 s38, s38, s41")
    e("v_and_b32 v1, 63, v0")
    e("v_lshrrev_b32 v4, 3, v1\nv_and_b32 v5, 7, v1\nv_lshrrev_b32 v6, 1, v4\nv_xor_b32 v5, v5, v6\nv_lshlrev_b32 v5, 4, v5")
    e("s_mov_b32 s41, 73728\nv_mul_lo_u32 v4, v4, s41\nv_add_u32 v2, v4, v5\nv_xor_b32 v3, 64, v2")
    e(f"v_lshrrev_b32 v5, 3, v1\nv_mul_u32_u24 v4, {st}, v5\nv_bfe_u32 v5, v1, 4, 1\nv_lshlrev_b32 v5, 2, v5\nv_and_b32 v6, 7, v1\nv_xor_b32 v6, v6, v5\nv_lshl_add_u32 v4, v6, 4, v4")
    e(f"v_lshrrev_b32 v5, 2, v1\nv_lshrrev_b32 v6, 4, v1\nv_xor_b32 v5, v5, v6\nv_and_b32 v5, 1, v5\nv_and_b32 v6, 3, v1\nv_lshlrev_b32 v6, 5, v6\nv_lshrrev_b32 v7, 5, v1\nv_lshl_add_u32 v7, v7, 4, v6\nv_lshl_add_u32 v7, v5, 30, v7")
    def group(c):
        def wd(eidx):
            def f(e):
                if eidx==0 and c>0:
                    e("s_add_u32 s38, s38, 8192")
                    if (c+1)%3==0: e("s_sub_u32 s38, s38, s40")
                e(f"s_add_u32 s41, s37, {(64*c+8*eidx)*st}")
                e(f"s_add_u32 m0, s38, {eidx*1024}")
                e("buffer_load_dwordx4 v4, s[20:23], s41 offen lds", tag=('G',c))
            return f
        def xd(q):
            def f(e):
                e.wait_lg_tag(('x',c-2))
                e(f"s_add_u32 m0, s36, {(c%2)*4096+q*1024-c*128 & 0xffffffff}")
                e(f"buffer_load_dwordx4 v{2+(q&1)}, s[16:19], s{32+q} offen offset:{c*128} lds", tag=('G',c))
            return f
        def gd(e): e(f"buffer_load_dwordx4 v[{16+4*(c%3)}:{19+4*(c%3)}], v7, s[12:15], 0 offen offset:{128*c}", tag=('G',c))
        return [wd(0),wd(1)]+[xd(q) for q in range(4)]+[gd]
    for f in group(0)[2:]+group(0)[:2]: f(e)
    for f in group(1)[2:]+group(1)[:2]: f(e)
    e("v_lshlrev_b32 v15, 4, v1")
    CP=opt.get('cp',4) if H else 0
    def pf(c):
        def f(e):
            e(f"buffer_load_dword v30, v28, s[16:19], s32 offen offset:{c*128}")
            e(f"s_add_u32 s41, s43, {64*c*9216}\nbuffer_load_dword v31, v29, s[20:23], s41 offen")
        return f
    if CP:
        e(f"s_lshr_b32 s41, s54, 2\ns_mul_i32 s41, s41, 6\nv_add_u32 v28, s41, v1\nv_min_u32 v28, 31, v28\ns_mov_b32 s41, 73728\nv_mul_lo_u32 v28, v28, s41\nv_cmp_gt_u32 vcc, 6, v1\nv_mov_b32 v31, {hex(OOB)}\nv_cndmask_b32 v28, v31, v28, vcc")
        e(f"s_and_b32 s41, s54, 3\ns_lshl_b32 s41, s41, 3\ns_add_u32 s41, s41, s28\ns_lshl_b32 s42, s41, 1\nv_mul_u32_u24 v29, 43, v1\nv_lshrrev_b32 v29, 7, v29\nv_mul_u32_u24 v30, 3, v29\nv_sub_u32 v30, v1, v30\nv_add_u32 v29, s42, v29\nv_mul_u32_u24 v29, 9216, v29\nv_lshl_add_u32 v29, v30, 7, v29\nv_cndmask_b32 v29, v31, v29, vcc")
        e(f"s_lshl_b32 s42, s41, 2\nv_add_u32 v5, s42, v1\nv_mul_u32_u24 v5, 9216, v5\nv_cmp_gt_u32 vcc, 4, v1\nv_cndmask_b32 v5, v31, v5, vcc")
        for c in range(2,CP): pf(c)(e)
    e("v_and_b32 v0, 31, v1\nv_lshrrev_b32 v6, 5, v1\nv_lshrrev_b32 v13, 1, v0\nv_and_b32 v13, 7, v13\nv_xor_b32 v13, v13, v6\nv_lshlrev_b32 v13, 4, v13\nv_lshlrev_b32 v0, 7, v0\nv_add_u32 v0, s36, v0")
    for kk in range(4): e(f"v_xor_b32 v{8+kk}, {32*kk}, v13\nv_add_u32 v{8+kk}, v{8+kk}, v0")
    e("v_lshrrev_b32 v0, 5, v1\nv_lshlrev_b32 v0, 10, v0\nv_bfe_u32 v6, v1, 2, 2\nv_lshl_add_u32 v0, v6, 7, v0\nv_bfe_u32 v6, v1, 3, 1\nv_lshl_add_u32 v0, v6, 6, v0\nv_bfe_u32 v6, v1, 4, 1\nv_lshl_add_u32 v0, v6, 5, v0\nv_and_b32 v6, 3, v1\nv_lshl_add_u32 v14, v6, 3, v0")
    e(f"v_add_u32 v12, {RAO}, v14\nv_xor_b32 v13, 64, v12\nv_mov_b32 v0, 0")
    if H:
        e("s_lshr_b32 s55, s3, 1\ns_lshr_b32 s42, s54, 2\ns_mul_i32 s45, s31, 294912\ns_mul_i32 s41, s55, 73728\ns_add_u32 s45, s45, s41\ns_lshl_b32 s41, s42, 11\ns_add_u32 s45, s45, s41")
        e(f"s_lshl_b32 s52, s31, 2\ns_add_u32 s52, s52, s55\ns_lshl_b32 s52, s52, 9\ns_lshl_b32 s41, s42, 3\ns_add_u32 s52, s52, s41\ns_add_u32 s52, s52, {HF}")
        e(f"s_mov_b32 s46, {hex(f32bits(-LOG2E))}")
    else:
        e(f"s_mul_i32 s45, s30, 12288\ns_mul_i32 s41, s31, 36864\ns_add_u32 s45, s45, s41\ns_add_u32 s45, s45, {U_OFF}")
    e(f"s_mul_i32 s47, s28, {8*st}\ns_add_u32 s47, s47, s43\ns_add_u32 s47, s47, 256\ns_lshl_b32 s48, s28, 10")
    steps=[(t,4*c+kk) for c in range(9) for kk in range(4) for t in range(3)]+[(t,k) for t in (3,4,5) for k in range(36)]
    slot={0:0,1:1,2:2,3:3,4:0,5:1}
    def frag_read(e,m):
        t,k=steps[m]; r=FR+4*(m%NR)
        tag=None
        if t<2: base,off,tag=12+t,((k//4+1)%3)*8192+(k%4)*2048,('a',k//4)
        else:
            base={2:14,3:14,4:12,5:13}[t]; off=(k%32)*2048
            if t==3: tag='b'
            if k==32: e(f"v_add_u32 v{base}, 65536, v{base}")
            if k==0 and t==3: e(f"v_subrev_u32 v14, {RAO}, v13")
            if k==0 and t>3: e(f"v_add_u32 v{base}, {PC-RAO}, v{base}")
        e(f"ds_read_b64_tr_b16 v[{r}:{r+1}], v{base} offset:{off}",tag=tag)
        e(f"ds_read_b64_tr_b16 v[{r+2}:{r+3}], v{base} offset:{off+512}",tag=tag)
    def xreads(e,c):
        for kk in range(4):
            r=XFR+4*(4*c+kk); e(f"ds_read_b128 v[{r}:{r+3}], v{8+kk} offset:{(c%2)*4096}", tag=('x',c))
    def tdma(i):
        def f(e):
            e(f"s_add_u32 s41, s47, {i*64*st}\ns_add_u32 m0, s48, {PC+i*8192}")
            e("buffer_load_dwordx4 v4, s[20:23], s41 offen lds", tag='T')
        return f
    def epi(t):
        a=ACC+16*slot[t]; L=[]
        for half in range(2):
            P=16+4*((2*t+half)%2)
            if H:
                for pp in range(2):
                    x=[a+8*half+4*pp+u for u in range(4)]; tt=[24+4*pp+u for u in range(4)]
                    L+=[f"v_mul_f32 v{tt[u]}, s46, v{x[u]}" for u in range(4)]
                    L+=[f"v_exp_f32 v{tt[u]}, v{tt[u]}" for u in range(4)]
                    L+=[f"v_fma_f32 v{tt[u]}, v{tt[u]}, v6, v6" for u in range(4)]
                    L+=[f"v_rcp_f32 v{tt[u]}, v{tt[u]}" for u in range(4)]
                    L+=[f"v_mul_f32 v{tt[u]}, v{x[u]}, v{tt[u]}" for u in range(4)]
                    L+=[f"v_cvt_pk_bf16_f32 v{P+2*pp+u}, v{tt[2*u]}, v{tt[2*u+1]}" for u in range(2)]
                def stf(e,P=P,half=half):
                    if half==0: e(f"s_add_u32 s51, s45, {t*12288}")
                    e(f"buffer_store_dwordx4 v[{P}:{P+3}], v15, s[24:27], s51 offen offset:{half*1024} {opt.get('hsc','sc1').replace('-','')}", tag=('H',t))
                L.append(stf)
            else:
                for p in range(4): L.append(f"v_cvt_pk_bf16_f32 v{P+p}, v{a+8*half+2*p}, v{a+8*half+2*p+1}")
                L.append(f"s_add_u32 s51, s45, {t*2048}\nbuffer_store_dwordx4 v[{P}:{P+3}], v15, s[24:27], s51 offen offset:{half*1024} sc1")
        return L
    def flag(t):
        def f(e):
            e.wait_vm_tag(('H',t))
            e(f"buffer_store_dwordx2 v[{NV}:{NV+1}], v8, s[24:27], s52 offen offset:{t*48} sc1")
        return f
    fill={m:[] for m in range(len(steps)+1)}
    for c in range(2,9):
        gp=[int(x) for x in str(opt.get('gp','1122334'))]
        for j,f in enumerate(group(c)): fill[max(12*(c-2)-3+gp[j],0)].append(f)
        if CP and 2<=c+CP-2<9: fill[max(12*(c-2)-3+gp[6],0)].append(pf(c+CP-2))
    if CP: fill[opt.get('cp3',40)].append("buffer_load_dword v5, v5, s[20:23], s43 offen offset:256")
    for j,p in enumerate(spread(9,98,opt.get('te',116))): fill[p].append(tdma(j))
    for c in range(9):
        for kk in range(4):
            xr=XFR+4*(4*c+kk); d=96+4*kk; a=16+4*(c%3)
            fill[12*c+2+2*kk].append(f"v_mfma_f32_16x16x32_bf16 v[{d}:{d+3}], v[{a}:{a+3}], v[{xr}:{xr+3}], {f'v[{d}:{d+3}]' if c else '0'}")
    fill[85].append(lambda e: nonce_issue(e,0))
    fill[96].append(f"v_cmp_eq_u32 vcc, 0, v1\nv_mov_b32 v9, {hex(OOB)}\nv_cndmask_b32 v8, v9, v0, vcc")
    zf=["v_add_f32 v5, v96, v101\nv_add_f32 v6, v106, v111\nv_add_f32 v5, v5, v6"]
    if H: zf+=[f"v_mul_f32 v5, {hex(f32bits(LOG2E))}, v5","v_exp_f32 v5, v5","v_add_f32 v5, 1.0, v5",f"v_min_f32 v6, {hex(f32bits(1e38))}, v5"]
    else:
        zf+=[f"v_mul_f32 v5, {hex(f32bits(-LOG2E))}, v5","v_exp_f32 v5, v5","v_add_f32 v5, 1.0, v5","v_rcp_f32 v6, v5",
             "v_bfe_u32 v10, v1, 2, 1\nv_lshlrev_b32 v10, 6, v10\nv_bfe_u32 v11, v1, 3, 2\nv_lshl_add_u32 v10, v11, 4, v10\nv_and_b32 v11, 3, v1\nv_lshl_add_u32 v10, v11, 2, v10\nv_lshrrev_b32 v11, 5, v1\nv_lshl_add_u32 v10, v11, 30, v10",
             f"s_lshl_b32 s41, s31, 7\ns_add_u32 s41, s41, {G_OFF}\nbuffer_store_dword v6, v10, s[24:27], s41 offen sc1"]
    fill[107]+=zf[:1]; fill[108]+=zf[1:]
    fill[108].append(lambda e: nonce_check(e,0))
    E0=opt.get('e0',109); E1=opt.get('e1',216)
    ops=[o for t in range(5) for o in epi(t)]
    pos=spread(len(ops),E0,E1)
    for o,p in zip(ops,pos): fill[p].append(o)
    FORK=180
    late=[]
    if H:
        FD=opt.get('fd',30); n=len(ops)//5
        for t in range(5):
            p=pos[(t+1)*n-1]+FD
            if p<216: fill[p].append(flag(t))
            else: late.append(t)
        late.append(5)
        def pfw(e):
            srd(e,12,96,4608*1152)
            pcptr(e,16,"GTR",""); e(f"s_mov_b32 s18, {576*1152}\ns_mov_b32 s19, 0x20000")
            if opt.get('pw2',1):
                e(f"s_lshl_b32 s41, s54, 3\ns_add_u32 s41, s41, s28\ns_mul_i32 s42, s41, 6912\ns_mul_i32 s44, s55, {1152*1152}\ns_add_u32 s42, s42, s44\nv_lshlrev_b32 v11, 7, v1")
                e("v_add_u32 v10, s42, v11\nbuffer_load_dword v10, v10, s[12:15], 0 offen")
                e(f"s_min_u32 s41, s41, 20\ns_lshl_b32 s41, s41, 13\ns_mul_i32 s44, s55, {144*1152}\ns_add_u32 s41, s41, s44\nv_add_u32 v11, s41, v11\nbuffer_load_dword v11, v11, s[16:19], 0 offen")
        fill[opt.get('pwp',112)].append(pfw)
    def run(e, lo, hi, fl):
        for m in range(lo,hi):
            t,k=steps[m]; mr=m+RA
            if mr<108 and mr%12==0:
                c=mr//12; e.wait_vm_tag(('G',c)); e.wait_lg_tag(('a',c-1)); e("s_barrier"); xreads(e,c)
            if m==97: e("s_barrier")
            if mr==144: e.wait_vm_tag('T'); e.wait_lg_tag('b'); e("s_barrier")
            if m in (36,72,108,144,180): ts(e,{36:2,72:3,108:4,144:5,180:6}[m])
            if mr<len(steps): frag_read(e,mr)
            a=ACC+16*slot[t]; r=FR+4*(m%NR); xr=XFR+4*k
            cin = f"v[{a}:{a+15}]" if k>0 else "0"
            if H: e(f"v_mfma_f32_32x32x16_bf16 v[{a}:{a+15}], v[{r}:{r+3}], v[{xr}:{xr+3}], {cin}")
            else: e(f"v_mfma_f32_32x32x16_bf16 v[{a}:{a+15}], v[{xr}:{xr+3}], v[{r}:{r+3}], {cin}")
            for f in fill[m]+fl.get(m,[]):
                if callable(f): f(e)
                else: e(f)
    e.wait_vm_tag(('G',0)); e("s_barrier"); ts(e,1); xreads(e,0)
    for m in range(RA): frag_read(e,m)
    if not H:
        run(e,0,216,{})
        ts(e,7)
        for o in epi(5): e(o)
        e("s_waitcnt vmcnt(0)\ns_barrier")
        e(f"s_mul_i32 s41, s30, 64\ns_lshl_b32 s42, s29, 3\ns_add_u32 s41, s41, s42\ns_add_u32 s41, s41, {UF}")
        e("s_cmp_lg_u32 s28, 0\ns_cbranch_scc1 U_NOFLAG")
        e(f"buffer_store_dwordx2 v[{NV}:{NV+1}], v8, s[24:27], s41 offen sc1")
        e.label("U_NOFLAG")
        ts.end(e,8); e("s_endpgm")
        return [e]
    run(e,0,FORK,{})
    e("s_cmp_ge_u32 s28, 4\ns_cbranch_scc1 G2_LOAD")
    el=e.fork(); el.label("G2_LOAD")
    def epi5(e):
        for o in epi(5):
            if callable(o): o(e)
            else: e(o)
    g2_compute(e,opt,lambda: (run(e,FORK,216,{}),ts(e,7),epi5(e)),[flag(t) for t in late])
    g2_loader(el,opt,lambda fl: run(el,FORK,216,fl),lambda: epi5(el),{t:flag(t) for t in late})
    return [e,el]

TSZ=4096; SL=40960; NCH=21
def g2_ids(e):
    e("s_and_b32 s29, s3, 1\ns_lshl_b32 s29, s29, 3\ns_and_b32 s42, s54, 7\ns_add_u32 s29, s29, s42\ns_lshr_b32 s30, s54, 3")
def g2_compute(e,opt,finish_g1,lateflags):
    ts=opt['TS']
    finish_g1()
    g2_ids(e)
    B0=32; HB=36; ZB=40; B1=44
    e("v_lshrrev_b32 v5, 5, v1\nv_lshlrev_b32 v5, 8, v5\nv_bfe_u32 v6, v1, 2, 2\nv_lshlrev_b32 v6, 6, v6\nv_add_u32 v5, v5, v6")
    e(f"v_and_b32 v6, 1, v1\nv_lshlrev_b32 v6, 5, v6\nv_add_u32 v5, v5, v6\nv_bfe_u32 v6, v1, 4, 1\nv_lshlrev_b32 v6, 4, v6\nv_add_u32 v5, v5, v6\nv_bfe_u32 v6, v1, 1, 1\nv_lshlrev_b32 v6, 3, v6\nv_add_u32 v{B0}, v5, v6")
    e(f"s_lshl_b32 s42, s28, 12\ns_add_u32 s42, s42, {6*TSZ}\nv_add_u32 v{HB}, s42, v15\nv_add_u32 v{ZB}, s42, v{B0}")
    e(f"v_and_b32 v5, 63, v{B0}\nv_and_b32 v6, 0xffffffc0, v{B0}\nv_lshl_add_u32 v5, v6, 1, v5\nv_bfe_u32 v6, v1, 3, 1\nv_lshl_add_u32 v{B0}, v6, 6, v5\nv_xor_b32 v{B1}, 64, v{B0}")
    for s in range(1,4): e(f"v_add_u32 v{B0+s}, {s*SL}, v{B0}\nv_add_u32 v{B1+s}, {s*SL}, v{B1}\nv_add_u32 v{HB+s}, {s*SL}, v{HB}\nv_add_u32 v{ZB+s}, {s*SL}, v{ZB}")
    AC=160; F2=64; HFr=16; RA2=opt.get('ra2',6); NR2=RA2+1
    steps=[(n,t) for n in range(81) for t in range(6)]
    def frag_read(m):
        n,t=steps[m]; q=(n//4)%4; o=(n%4)*1024; r=F2+4*(m%NR2)
        if t==0:
            hr=HFr+4*(n%2)
            if n<72: e(f"ds_read_b128 v[{hr}:{hr+3}], v{HB+q} offset:{o}")
            else: e(f"ds_read_b64_tr_b16 v[{hr}:{hr+1}], v{ZB+q} offset:{o}\nds_read_b64_tr_b16 v[{hr+2}:{hr+3}], v{ZB+q} offset:{o+512}")
        b=(B1 if t&1 else B0)+q; o=2*o+(t//2)*8192
        e(f"ds_read_b64_tr_b16 v[{r}:{r+1}], v{b} offset:{o}")
        e(f"ds_read_b64_tr_b16 v[{r+2}:{r+3}], v{b} offset:{o+1024}")
    def xsetup(e):
        e("s_mul_i32 s44, s29, 3\ns_add_u32 s44, s44, s30")
        e(f"s_mul_i32 s45, s44, {16*12288}\ns_mul_i32 s42, s28, 3072\ns_add_u32 s45, s45, s42\ns_add_u32 s45, s45, {P_OFF}\ns_mul_i32 s42, s55, {4*12288}\ns_add_u32 s46, s45, s42\ns_mul_i32 s42, s55, 12288\ns_add_u32 s45, s45, s42")
        e(f"s_lshl_b32 s47, s44, 2\ns_add_u32 s47, s47, s28\ns_lshl_b32 s47, s47, 7\ns_add_u32 s47, s47, {XF}\ns_lshl_b32 s42, s55, 3\ns_add_u32 s49, s47, s42")
        e("s_lshl_b32 s48, s29, 2\ns_add_u32 s48, s48, s28\ns_mul_i32 s48, s48, 1152\ns_mul_i32 s42, s30, 384\ns_add_u32 s48, s48, s42")
        e("v_and_b32 v5, 31, v1\ns_mov_b32 s42, 73728\nv_mul_lo_u32 v7, v5, s42\nv_lshrrev_b32 v6, 5, v1\nv_lshl_add_u32 v7, v6, 5, v7")
        e("v_min_u32 v5, 2, v1\nv_cmp_le_u32 vcc, s55, v5\nv_addc_co_u32 v5, vcc, 0, v5, vcc\nv_lshlrev_b32 v5, 3, v5")
        srd(e,20,98,2048*1152)
    fl={}
    for i,f in enumerate(lateflags): fl[opt.get('lf0',24)+i*opt.get('lfd',36)]=f
    fl[200]=xsetup
    e("s_barrier"); ts(e,8)
    for m in range(RA2): frag_read(m)
    for m,(n,t) in enumerate(steps):
        mr=m+RA2
        if m in (144,288,432): ts(e,{144:9,288:10,432:11}[m])
        if mr<len(steps):
            if mr%24==0: e("s_barrier")
            frag_read(mr)
        a=AC+16*t; r=F2+4*(m%NR2); hr=HFr+4*(n%2)
        cin=f"v[{a}:{a+15}]" if n>0 else "0"
        e(f"v_mfma_f32_32x32x16_bf16 v[{a}:{a+15}], v[{r}:{r+3}], v[{hr}:{hr+3}], {cin}")
        if m in fl: fl[m](e)
    ts(e,12)
    e("s_cmp_eq_u32 s55, 1\ns_cbranch_scc1 XV1\ns_cmp_eq_u32 s55, 2\ns_cbranch_scc1 XV2\ns_cmp_eq_u32 s55, 3\ns_cbranch_scc1 XV3")
    txt=[]
    for ks in range(4):
        x=e.fork()
        if ks: x.label(f"XV{ks}")
        i=0
        for u in range(12):
            d=u//3
            if d==ks: continue
            a=AC+8*u; P=64+4*i; i+=1
            for p in range(4): x(f"v_cvt_pk_bf16_f32 v{P+p}, v{a+2*p}, v{a+2*p+1}")
            if u%3==0: x(f"s_add_u32 s42, s45, {d*4*12288}")
            x(f"buffer_store_dwordx4 v[{P}:{P+3}], v15, s[24:27], s42 offen offset:{(u%3)*1024} sc1")
        x("s_waitcnt vmcnt(0)")
        x(f"buffer_store_dwordx2 v[{NV}:{NV+1}], v8, s[24:27], s49 offen sc1")
        check_spin(x,10,5,"s47",0)
        i=0
        for s in range(4):
            if s==ks: continue
            x(f"s_add_u32 s42, s46, {s*12288}")
            for u in range(3):
                P=112+4*(3*i+u); x(f"buffer_load_dwordx4 v[{P}:{P+3}], v15, s[24:27], s42 offen offset:{u*1024} sc1")
            i+=1
        for i in range(3):
            for u in range(3):
                a=AC+8*(3*ks+u); P=112+4*(3*i+u)
                for p in range(4):
                    x(f"v_lshlrev_b32 v{16+2*p}, 16, v{P+p}\nv_and_b32 v{17+2*p}, 0xffff0000, v{P+p}")
                for p in range(8): x(f"v_add_f32 v{a+p}, v{a+p}, v{16+p}")
                if i==2:
                    Q=64+4*u; U=3*ks+u
                    for p in range(4): x(f"v_cvt_pk_bf16_f32 v{Q+p}, v{a+2*p}, v{a+2*p+1}")
                    x(f"buffer_store_dwordx4 v[{Q}:{Q+3}], v7, s[20:23], s48 offen offset:{(U//2)*64+(U%2)*16}")
        ts.end(x,13); x("s_endpgm")
        txt.append(x.text())
    e.raw('\n'.join(txt))
def g2_loader(e,opt,run_g1,epi5,lateflags):
    ts=opt['TS']
    def setup(e):
        g2_ids(e)
        e("s_sub_u32 s32, s28, 4")
        e("v_lshrrev_b32 v5, 2, v1\nv_and_b32 v0, 3, v1\nv_lshlrev_b32 v0, 4, v0\nv_mul_u32_u24 v4, 1152, v5\nv_add_u32 v4, v4, v0\nv_and_b32 v0, 1, v1\nv_lshlrev_b32 v0, 10, v0\nv_lshl_add_u32 v7, v5, 12, v0\nv_bfe_u32 v0, v1, 1, 1\nv_lshl_add_u32 v7, v0, 4, v7")
        e("v_lshrrev_b32 v5, 3, v1\nv_mul_u32_u24 v4, 1152, v5\nv_bfe_u32 v5, v1, 4, 1\nv_lshlrev_b32 v5, 2, v5\nv_and_b32 v0, 7, v1\nv_xor_b32 v0, v0, v5\nv_lshl_add_u32 v4, v0, 4, v4")
        e("v_min_u32 v0, 5, v1\nv_lshlrev_b32 v0, 3, v0\nv_min_u32 v5, 36, v1\nv_lshlrev_b32 v5, 3, v5")
        e("s_lshl_b32 s33, s29, 2\ns_add_u32 s33, s33, s32")
        e(f"s_lshl_b32 s39, s33, 2\ns_add_u32 s39, s39, s55\ns_lshl_b32 s39, s39, 9\ns_add_u32 s39, s39, {HF}")
        e(f"s_and_b32 s40, s33, 31\ns_lshl_b32 s40, s40, 5\ns_lshr_b32 s42, s33, 5\ns_lshl_b32 s42, s42, 11\ns_add_u32 s40, s40, s42\ns_mul_i32 s42, s55, {144*4096}\ns_add_u32 s40, s40, s42\ns_add_u32 s40, s40, {ZT_OFF}")
        e("s_mul_i32 s33, s33, 294912\ns_mul_i32 s42, s55, 73728\ns_add_u32 s33, s33, s42")
        e(f"s_lshl_b32 s34, s32, 12\ns_add_u32 s34, s34, {6*TSZ}\ns_lshl_b32 s36, s32, 11")
        e(f"s_lshr_b32 s42, s32, 1\ns_mul_i32 s35, s42, {192*1152}\ns_and_b32 s42, s32, 1\ns_mul_i32 s42, s42, {16*1152}\ns_add_u32 s35, s35, s42\ns_mul_i32 s42, s55, {1152*1152}\ns_add_u32 s35, s35, s42\ns_mul_i32 s43, s30, 384\ns_add_u32 s35, s35, s43")
        e(f"s_mul_i32 s44, s55, {144*1152}\ns_add_u32 s44, s44, s43\ns_mul_i32 s42, s32, {16*1152}\ns_add_u32 s43, s44, s42")
        e(f"s_mov_b32 s47, {ZF}")
    def wpart(c):
        so=(c%4)*SL; L=[]
        if c<18: sb,lit,R="s35",(384*(c%3)+32*(c//3))*1152,12
        else: sb,lit,R="s43",64*(c-18)*1152,16
        if c<20:
            for t in range(6):
                def f(e,t=t):
                    pp,z=t%3,t//3
                    if pp==0: e(f"s_add_u32 s37, {sb}, {lit+z*9216}")
                    e(f"s_add_u32 m0, s36, {(so+pp*8192+z*1024-pp*128)&0xffffffff}")
                    e(f"buffer_load_dwordx4 v4, s[{R}:{R+3}], s37 offen offset:{pp*128} lds", tag=c)
                L.append(f)
        else:
            def f(e):
                for z in range(2):
                    if z==0: e("s_mov_b32 s42, s32")
                    else: e("s_add_u32 s42, s32, 4\ns_min_u32 s42, s42, 5")
                    e(f"s_and_b32 s38, s42, 1\ns_lshr_b32 s42, s42, 1\ns_mul_i32 s37, s38, 9216\ns_add_u32 s37, s37, s44\ns_add_u32 s37, s37, {128*1152}\ns_lshl_b32 s38, s38, 10\ns_lshl_b32 s48, s42, 7\ns_add_u32 s37, s37, s48\ns_lshl_b32 s42, s42, 13\ns_add_u32 s42, s42, s38\ns_add_u32 m0, s42, {so}")
                    e("buffer_load_dwordx4 v4, s[16:19], s37 offen lds", tag=c)
            L.append(f)
        return L
    hld=opt.get('hld','sc1')
    def hpart(c,e):
        so=(c%4)*SL
        if c<18:
            e(f"s_add_u32 s38, s33, {c*4096}\ns_add_u32 m0, s34, {so}")
            for kk in range(4): e(f"buffer_load_dwordx4 v15, s[24:27], s38 offen offset:{kk*1024} {hld} lds", tag=c)
        else:
            for kk in range(4 if c<20 else 1):
                e(f"s_add_u32 s38, s40, {(64*(c-18)+16*kk)*4096}\ns_add_u32 m0, s34, {so+kk*1024}")
                e(f"buffer_load_dwordx4 v7, s[24:27], s38 offen {hld} lds", tag=c)
    fl={180:[setup]}
    W=[f for c in range(2) for f in wpart(c)]
    for i,f in enumerate(W): fl.setdefault(181+i,[]).append(f)
    fl.setdefault(opt.get('p0i',190),[]).append(lambda e: poll_issue(e,10,0,"s39",0))
    PCK=opt.get('p0c',208)
    fl.setdefault(PCK,[]).append(lambda e: check_spin(e,10,0,"s39",0,issue=False))
    for c in range(2): fl.setdefault(min(PCK+2*c,215),[]).append(lambda e,c=c: hpart(c,e))
    fl.setdefault(215,[]).append(lambda e: poll_issue(e,10,0,"s39",48))
    run_g1(fl); ts(e,7); epi5()
    late=dict(lateflags)
    for c in range(NCH):
        e.wait_vm_tag(c); e("s_barrier")
        if c in (0,6,12,18): ts(e,{0:8,6:9,12:10,18:11}[c])
        n=c+2
        if n<NCH:
            if n<18 and n%3==0: check_spin(e,10,0,"s39",(n//3)*48,issue=False)
            if n==18: check_spin(e,10,5,"s47",0,issue=False)
            if 2<n<15 and n%3==2: poll_issue(e,10,0,"s39",(n//3+1)*48)
            if n==17: poll_issue(e,10,5,"s47",0)
            for f in wpart(n): f(e)
            hpart(n,e)
        if c>=1 and late and c%2==1:
            t=min(late); late.pop(t)(e)
    assert not late
    ts.end(e,12); e("s_endpgm")

def fft(e, opt):
    ts=opt['TS']
    C32=0;S32=2048;N32=4096;C64=6144;S64=14336;N64=22528;T1=30720;T2=47104; WL=65536
    e("s_load_dwordx4 s[44:47], s[0:1], 8")
    pcptr(e,12,"FFTTAB","")
    e(f"s_mov_b32 s14, {64*1024}\ns_mov_b32 s15, 0x20000")
    e("v_and_b32 v1, 63, v0\nv_lshlrev_b32 v9, 4, v1\ns_lshl_b32 s42, s28, 13\nv_add_u32 v7, s42, v9\nv_mov_b32 v0, 0")
    e("s_lshl_b32 m0, s28, 13")
    for i in range(4): e(f"buffer_load_dwordx4 v7, s[12:15], 0 offen offset:{i*1024} lds", tag='T')
    e("s_movk_i32 s42, 0x1000\ns_add_u32 m0, m0, s42")
    for i in range(4): e(f"buffer_load_dwordx4 v7, s[12:15], s42 offen offset:{i*1024} lds", tag='T')
    nonce_issue(e,0)
    srd(e,16,44,2048*578); srd(e,20,46,2048*578)
    e(f"s_lshl_b32 s30, s29, 3\ns_min_u32 s31, s30, 281\ns_add_u32 s30, s30, s28\ns_sub_u32 s34, s30, s31\ns_lshl_b32 s31, s31, 1\ns_mul_i32 s42, s28, {256*578}\ns_add_u32 s31, s31, s42")
    e(f"v_mul_u32_u24 v7, 578, v1\nv_add_u32 v7, s31, v7\ns_lshl_b32 s32, s28, 12\ns_add_u32 s32, s32, {WL}")
    for ri in range(2):
        for b in range(4 if not opt.get('now',0) else 0):
            e(f"s_add_u32 m0, s32, {ri*32768+b*1024}\ns_mov_b32 s42, {b*64*578}")
            e(f"buffer_load_dwordx4 v7, s[{16+4*ri}:{19+4*ri}], s42 offen lds", tag='T')
    nonce_check(e,0)
    PA=96; PB=64; WR=32; A1=128; A2=192; GL=131072
    def pk(base,T,ri,t): r=base+16*T+8*ri+4*t; return f"v[{r}:{r+3}]"
    def ac(base,T,ri): r=base+32*T+16*ri; return f"v[{r}:{r+15}]"
    e(f"v_and_b32 v5, 31, v1\nv_lshrrev_b32 v6, 5, v1\nv_lshlrev_b32 v7, 4, v5\nv_lshl_add_u32 v7, v6, 11, v7\ns_lshl_b32 s34, s34, 1\ns_add_u32 s34, s34, {WL}\nv_add_u32 v7, s34, v7")
    e.wait_all(); e("s_barrier")
    for mt in range(2):
        for ri in range(2):
            for r in range(16):
                e(f"ds_read_u16{'_d16_hi' if r&1 else ''} v{A1+32*mt+16*ri+r}, v7 offset:{ri*32768+mt*16384+(r//4)*4096+(r%4)*512}")
    for mt in range(2):
        for ri in range(2):
            for rp in range(8): e(f"v_or_b32 v{WR+16*mt+8*ri+rp}, v{A1+32*mt+16*ri+2*rp}, v{A1+32*mt+16*ri+2*rp+1}")
    e("v_lshrrev_b32 v8, 3, v1\nv_lshrrev_b32 v10, 1, v8\ns_and_b32 s42, s28, 1\ns_lshl_b32 s42, s42, 2\nv_add_u32 v10, s42, v10\nv_and_b32 v11, 7, v1\nv_xor_b32 v10, v10, v11\nv_lshlrev_b32 v10, 4, v10")
    e("v_lshl_add_u32 v12, v8, 7, v10\nv_mul_u32_u24 v8, 36864, v8\nv_add_u32 v8, v8, v10")
    e(f"s_lshr_b32 s42, s29, 2\ns_lshl_b32 s42, s42, 11\ns_and_b32 s35, s29, 3\ns_lshl_b32 s35, s35, 7\ns_add_u32 s35, s35, s42\ns_mul_i32 s42, s28, {8*36864}\ns_add_u32 s35, s35, s42\ns_add_u32 s35, s35, {U_OFF}\ns_add_u32 s36, s35, {9*2048}")
    e(f"s_lshl_b32 s32, s28, 10\ns_add_u32 s39, s32, {G_OFF}")
    e(f"v_bfe_u32 v15, v1, 1, 3\nv_xor_b32 v13, s28, v15\nv_lshlrev_b32 v13, 4, v13\nv_lshl_add_u32 v13, v5, 7, v13\nv_lshl_add_u32 v13, v6, 13, v13\nv_add_u32 v13, {WL}, v13")
    e(f"v_lshlrev_b32 v4, 2, v6\nv_xor_b32 v4, v4, v15\nv_lshlrev_b32 v4, 4, v4\nv_lshl_add_u32 v4, v5, 7, v4\nv_add_u32 v4, {GL}, v4")
    e(f"s_lshl_b32 s31, s30, 12\ns_add_u32 s33, s31, {288*4096}\ns_cmp_eq_u32 s30, 0\ns_cselect_b32 s33, {hex(OOB)}, s33\ns_cmp_eq_u32 s30, 288\ns_cselect_b32 s33, {hex(OOB)}, s33")
    e(f"s_add_u32 s37, s31, {ZT_OFF}\ns_mov_b32 s38, {ZT_OFF}")
    e("v_lshlrev_b32 v5, 5, v5\nv_lshl_add_u32 v5, v6, 4, v5\nv_add_u32 v6, s33, v5\nv_mov_b32 v0, v9")
    e(f"v_min_u32 v7, 23, v1\nv_lshlrev_b32 v7, 3, v7\ns_mov_b32 s47, {UF}")
    e.wait_all()
    e("s_cmp_lg_u32 s28, 0\ns_cbranch_scc1 F_NOPOLL")
    check_spin(e,10,7,"s47",0)
    e.label("F_NOPOLL")
    ts(e,1); e("s_barrier")
    for ri in range(2):
        for hf in range(2):
            for h in range(2):
                im=hf*1024+h*512
                e(f"s_add_u32 m0, s32, {WL+((ri*2+hf)*2+h)*8192-im}")
                e(f"buffer_load_dwordx4 v8, s[24:27], s{35+ri} offen offset:{im} sc1 lds")
    e(f"s_add_u32 m0, s32, {GL}\nbuffer_load_dwordx4 v12, s[24:27], s39 offen sc1 lds")
    e.wait_all(); e("s_barrier")
    e("s_cmp_gt_u32 s30, 288\ns_cbranch_scc1 M_END")
    for T in range(2):
        for t in range(2):
            for ri in range(2): e(f"ds_read_b128 {pk(PB,T,ri,t)}, v13 offset:{ri*32768+t*16384+T*4096}")
    e(f"s_cmp_lg_u32 s33, {hex(OOB)}\ns_cbranch_scc1 F_NOZ")
    e.raw("s_waitcnt lgkmcnt(0)")
    for T in range(2):
        for r in range(8): e.raw(f" v_mov_b32 v{PB+16*T+8+r}, 0")
    e.raw("s_nop 1"); e.label("F_NOZ")
    def cr(i): return f"v[{8+4*i}:{11+4*i}]"
    def mf(D,A,B,first): e(f"v_mfma_f32_32x32x16_bf16 {D}, {A}, {B}, {'0' if first else D}")
    def ld32():
        for i,o in enumerate([C32,C32+1024,S32,S32+1024,N32,N32+1024]): e(f"ds_read_b128 {cr(i)}, v0 offset:{o}")
    def twid(src,dst,tmp,tab):
        def rd(i): e(f"ds_read_b128 {cr(i%6)}, v0 offset:{tab+i*1024}")
        for i in range(5): rd(i)
        for i in range(16):
            T,rp=i//8,i%8
            if i+5<16: rd(i+5)
            w=8+4*(i%6); ar=src+32*T+2*rp; ai=ar+16; tt=tmp+4*(i%2)
            for u in range(2):
                e(f"v_mul_f32 v{tt+u}, v{ar+u}, v{w+2*u}\nv_mul_f32 v{tt+2+u}, v{ai+u}, v{w+2*u}")
            for u in range(2):
                e(f"v_fma_f32 v{tt+u}, -v{ai+u}, v{w+2*u+1}, v{tt+u}\nv_fma_f32 v{tt+2+u}, v{ar+u}, v{w+2*u+1}, v{tt+2+u}")
            e(f"v_cvt_pk_bf16_f32 v{dst+16*T+rp}, v{tt}, v{tt+1}\nv_cvt_pk_bf16_f32 v{dst+16*T+8+rp}, v{tt+2}, v{tt+3}")
    ld32()
    for T in range(2):
        for t in range(2):
            mf(ac(A1,T,0),pk(PB,T,0,t),cr(t),t==0); mf(ac(A1,T,1),pk(PB,T,1,t),cr(t),t==0)
            mf(ac(A1,T,0),pk(PB,T,1,t),cr(2+t),False); mf(ac(A1,T,1),pk(PB,T,0,t),cr(4+t),False)
    ts(e,2); twid(A1,PA,A2,T1); ts(e,3)
    def big(kind):
        seq=[(o,ks) for o in range(2) for ks in range(4)]
        def rd(i):
            o,ks=seq[i]
            for z,b in enumerate((C64,S64,N64)): e(f"ds_read_b128 {cr(3*(i%2)+z)}, v0 offset:{b+(4*o+ks)*1024}")
        rd(0)
        for i,(o,ks) in enumerate(seq):
            c,s_,n=[cr(3*(i%2)+z) for z in range(3)]
            if kind==2:
                dr,di=pk(PA,ks//2,0,ks%2),pk(PA,ks//2,1,ks%2)
                mf(ac(A2,o,0),c,dr,ks==0)
                if i+1<8: rd(i+1)
                mf(ac(A2,o,1),c,di,ks==0); mf(ac(A2,o,0),s_,di,False); mf(ac(A2,o,1),n,dr,False)
            else:
                dr,di=pk(PB,ks//2,0,ks%2),pk(PB,ks//2,1,ks%2)
                mf(ac(A1,o,0),dr,c,ks==0)
                if i+1<8: rd(i+1)
                mf(ac(A1,o,1),di,c,ks==0); mf(ac(A1,o,0),di,n,False); mf(ac(A1,o,1),dr,s_,False)
    big(2); ts(e,4)
    for i in range(16):
        mt,rp=i//8,i%8
        ar=A2+32*mt+2*rp; ai=ar+16; wr=WR+16*mt+rp; wi=wr+8; tt=A1+8*(i%2)
        e(f"v_lshlrev_b32 v{tt+4}, 16, v{wr}\nv_and_b32 v{tt+5}, 0xffff0000, v{wr}\nv_lshlrev_b32 v{tt+6}, 16, v{wi}\nv_and_b32 v{tt+7}, 0xffff0000, v{wi}")
        for u in range(2): e(f"v_mul_f32 v{tt+u}, v{ar+u}, v{tt+4+u}\nv_mul_f32 v{tt+2+u}, v{ai+u}, v{tt+4+u}")
        for u in range(2): e(f"v_fma_f32 v{tt+u}, -v{ai+u}, v{tt+6+u}, v{tt+u}\nv_fma_f32 v{tt+2+u}, v{ar+u}, v{tt+6+u}, v{tt+2+u}")
        e(f"v_cvt_pk_bf16_f32 v{PB+16*mt+rp}, v{tt}, v{tt+1}\nv_cvt_pk_bf16_f32 v{PB+16*mt+8+rp}, v{tt+2}, v{tt+3}")
    GR=WR
    for q in range(4):
        if q: e(f"v_xor_b32 v7, {16*q}, v4")
        for T in range(2): e(f"ds_read_b128 v[{GR+16*T+4*q}:{GR+16*T+4*q+3}], v{7 if q else 4} offset:{T*4096}")
    ts(e,5); big(3); ts(e,6)
    twid(A1,PA,A2,T2); ts(e,7)
    ld32()
    for T in range(2):
        for t in range(2):
            mf(ac(A2,T,0),cr(t),pk(PA,T,0,t),t==0); mf(ac(A2,T,1),cr(t),pk(PA,T,1,t),t==0)
            mf(ac(A2,T,0),cr(4+t),pk(PA,T,1,t),False); mf(ac(A2,T,1),cr(2+t),pk(PA,T,0,t),False)
    for T in range(2):
        for ri in range(2):
            for q in range(2):
                a=A2+32*T+16*ri+8*q; P=PB+16*T+8*ri+4*q; g=GR+16*T+8*q
                for p in range(8): e(f"v_mul_f32 v{a+p}, v{a+p}, v{g+p}")
                for p in range(4): e(f"v_cvt_pk_bf16_f32 v{P+p}, v{a+2*p}, v{a+2*p+1}")
                if ri==0: e(f"buffer_store_dwordx4 v[{P}:{P+3}], v5, s[24:27], s37 offen offset:{T*2048+q*1024} sc1")
                else:     e(f"buffer_store_dwordx4 v[{P}:{P+3}], v6, s[24:27], s38 offen offset:{T*2048+q*1024} sc1")
    ts(e,8)
    e(f"v_cmp_eq_u32 vcc, 0, v1\nv_mov_b32 v9, {hex(OOB)}\nv_cndmask_b32 v8, v9, v1, vcc\ns_lshl_b32 s41, s29, 3\ns_add_u32 s41, s41, {ZF}")
    e("s_waitcnt vmcnt(0)\ns_barrier\ns_cmp_lg_u32 s28, 0\ns_cbranch_scc1 F_NOFLAG")
    e(f"buffer_store_dwordx2 v[{NV}:{NV+1}], v8, s[24:27], s41 offen sc1")
    e.label("F_NOFLAG")
    ts.end(e,9); e("s_endpgm")

def helper(e,opt):
    e("s_sub_u32 s30, s54, 27\ns_lshl_b32 s30, s30, 3\ns_add_u32 s30, s30, s28\nv_and_b32 v1, 63, v0")
    pcptr(e,16,"FTAB",""); e(f"s_mov_b32 s18, {576*1152}\ns_mov_b32 s19, 0x20000")
    e("s_lshl_b32 s31, s30, 6\nv_add_u32 v4, s31, v1\nv_lshlrev_b32 v5, 7, v4")
    e(f"s_mov_b32 s35, {opt.get('hc0',1)*64*1152}\nbuffer_load_dword v16, v5, s[16:19], s35 offen")
    e(f"v_add_u32 v5, {2560*128+opt.get('hc0',1)*64*1152}, v5\nbuffer_load_dword v17, v5, s[16:19], 0 offen")
def helper2(e,opt):
    srd(e,16,96,4608*1152)
    e(f"s_mul_i32 s35, s33, {1152*1152}")
    for z in range(5):
        e(f"v_add_u32 v5, {z*2560}, v4\nv_min_u32 v5, 10367, v5\nv_lshlrev_b32 v5, 7, v5\nbuffer_load_dword v{48+z}, v5, s[16:19], s35 offen")
    pcptr(e,16,"GTR",""); e(f"s_mov_b32 s18, {576*1152}\ns_mul_i32 s35, s33, {144*1152}")
    e("v_min_u32 v5, 1295, v4\nv_lshlrev_b32 v5, 7, v5\nbuffer_load_dword v56, v5, s[16:19], s35 offen")

def mega(name,opt):
    e=Em()
    e.raw(f".globl {name}\n.p2align 8\n.type {name},@function\n{name}:")
    e("s_cmp_ge_u32 s2, 256\ns_cbranch_scc1 M_END")
    ts=TS(opt.get('ts',0),0); opt['TS']=ts; ts.start(e)
    e("s_load_dwordx2 s[4:5], s[0:1], 0\ns_load_dwordx2 s[6:7], s[0:1], 32\ns_load_dwordx2 s[8:9], s[0:1], 72\ns_load_dwordx2 s[10:11], s[0:1], 48\ns_load_dwordx2 s[96:97], s[0:1], 40\ns_load_dwordx2 s[98:99], s[0:1], 56\ns_load_dwordx2 s[100:101], s[0:1], 64\ns_memrealtime s[56:57]")
    e("v_lshrrev_b32 v1, 6, v0\nv_readfirstlane_b32 s28, v1")
    e("s_and_b32 s3, s2, 7\ns_lshr_b32 s54, s2, 3")
    e("s_waitcnt lgkmcnt(0)")
    e("s_or_b32 s41, s2, s28\ns_cmp_lg_u32 s41, 0\ns_cbranch_scc1 M_NONONCE")
    e.raw("s_or_b32 s56, s56, 1\n v_mov_b32 v2, s56\n v_mov_b32 v3, s57\n v_mov_b32 v4, 0\n global_store_dwordx2 v4, v[2:3], s[100:101] sc1\n s_nop 1\nM_NONONCE:")
    srd(e,24,8,WS_SZ)
    e("s_cmp_ge_u32 s54, 27\ns_cbranch_scc1 M_FFT")
    ef=e.fork()
    srd(e,16,4,2048*1152); srd(e,12,10,1152)
    e("s_cmp_ge_u32 s54, 24\ns_cbranch_scc1 M_U")
    eu=e.fork()
    srd(e,20,6,576*9216)
    e("s_and_b32 s29, s3, 1\ns_lshl_b32 s29, s29, 2\ns_and_b32 s42, s54, 3\ns_add_u32 s29, s29, s42")
    e("s_lshr_b32 s30, s3, 1\ns_mul_i32 s30, s30, 6\ns_lshr_b32 s42, s54, 2\ns_add_u32 s30, s30, s42")
    L=g1(e,'h',opt)
    eu.label("M_U")
    pcptr(eu,20,"FTAB","")
    eu(f"s_mov_b32 s22, {576*1152}\ns_mov_b32 s23, 0x20000\ns_sub_u32 s30, s54, 24")
    eu("s_and_b32 s29, s3, 1\ns_lshl_b32 s29, s29, 2\ns_lshr_b32 s42, s3, 1\ns_add_u32 s29, s29, s42")
    L+=g1(eu,'u',opt)
    ef.label("M_FFT")
    ef("s_mul_i32 s29, s3, 5\ns_add_u32 s29, s29, s54\ns_sub_u32 s29, s29, 27")
    if opt.get('hp',1):
        helper(ef,opt)
        if opt.get('h2',0)==1: helper2(ef,opt)
    ef("s_cmp_ge_u32 s29, 37\ns_cbranch_scc1 M_END")
    fft(ef,opt)
    ef.label("M_END"); ef.raw("s_waitcnt vmcnt(0)\ns_endpgm")
    return '\n'.join(x.text() for x in L+[ef])
```

```python
import numpy as np
from em import Em
NAME="gated_mix__spectral_gfnet__dense_activation_silu__prompt"
H_OFF   = 0;                 H_SZ  = 64*144*2048
U_OFF   = 0x1400000;         U_SZ  = 576*4096
WT_OFF  = 0x1700000;         WT_SZ = 289*8192
G_OFF   = 0x1A00000;         G_SZ  = 2048*4
ZT_OFF  = 0x1B00000;         ZT_SZ = 576*4096
P_OFF   = 0x1E00000;         P_SZ  = 4*64*18*2048
assert H_OFF+H_SZ<=U_OFF and U_OFF+U_SZ<=WT_OFF and WT_OFF+WT_SZ<=G_OFF
def bf16bits(x):
    u=int(np.float32(x).view(np.uint32)); return ((u+0x7fff+((u>>16)&1))>>16)&0xffff
def f32bits(x): return int(np.float32(x).view(np.uint32))
def srd(e, d, base, size, off=0):
    if off:
        e(f"s_add_u32 s{d}, s{base}, {hex(off)}\ns_addc_u32 s{d+1}, s{base+1}, 0")
    else:
        e(f"s_mov_b32 s{d}, s{base}\ns_mov_b32 s{d+1}, s{base+1}")
    e(f"s_mov_b32 s{d+2}, {hex(size)}\ns_mov_b32 s{d+3}, 0x20000")
def pcptr(e, d, sym, uniq):
    e(f"s_getpc_b64 s[{d}:{d+1}]")
    e(f"s_add_u32 s{d}, s{d}, {sym}@rel32@lo+4\ns_addc_u32 s{d+1}, s{d+1}, {sym}@rel32@hi+12")
def spread(n_items, lo, hi):
    return [lo + (j*(hi-lo))//n_items for j in range(n_items)]
def kdesc(name, vgpr=256, sgpr=96, acc=None):
    return f""".amdhsa_kernel {name}
  .amdhsa_next_free_vgpr {vgpr}
  .amdhsa_next_free_sgpr {sgpr}
  .amdhsa_accum_offset {acc or vgpr}
  .amdhsa_group_segment_fixed_size 0
  .amdhsa_kernarg_size 80
  .amdhsa_user_sgpr_count 2
  .amdhsa_user_sgpr_kernarg_segment_ptr 1
  .amdhsa_system_sgpr_workgroup_id_x 1
.end_amdhsa_kernel"""
TS_OFF=0x3000000
class TS:
    def __init__(s,on,kidx): s.on=on; s.k=kidx
    def start(s,e):
        s.a,s.b=("s_memrealtime","s_memtime") if s.on in (1,3) else ("s_memtime","s_memrealtime")
        if s.on: e(f"{s.a} s[64:65]\n{s.b} s[92:93]")
    def __call__(s,e,i):
        if s.on: e(f"{s.a} s[{64+2*i}:{65+2*i}]")
    def end(s,e,n,wsp=8,wait=True):
        if not s.on: return
        if wait: e("s_waitcnt vmcnt(0)")
        e(f"{s.a} s[{64+2*n}:{65+2*n}]\n{s.b} s[94:95]\ns_waitcnt lgkmcnt(0)")
        e("s_sub_u32 s94, s94, s92\nv_mov_b32 v0, 0")
        for i in range(n+1): e(f"v_writelane_b32 v0, s{64+2*i}, {i}")
        if s.on==3:
            if n==13:
                e("v_sub_u32 v0, v0, v2\nv_mbcnt_lo_u32_b32 v1, -1, 0\nv_mbcnt_hi_u32_b32 v1, -1, v1\nv_lshlrev_b32 v1, 2, v1\nv_add_u32 v1, 8, v1\ns_and_b32 s94, s54, 7\ns_or_b32 s94, s94, s28\ns_cmp_eq_u32 s94, 0\ns_cselect_b32 s94, 0x3fff, 0\ns_mov_b32 s95, 0\ns_mov_b64 exec, s[94:95]\ns_nop 1\nglobal_atomic_smax v1, v0, s[100:101] sc1")
            return
        e("v_writelane_b32 v0, s94, 15")
        srd(e,60,wsp,0x200000,TS_OFF)
        e(f"v_mbcnt_lo_u32_b32 v1, -1, 0\nv_mbcnt_hi_u32_b32 v1, -1, v1\nv_lshlrev_b32 v1, 2, v1\ns_lshl_b32 s94, s2, 3\ns_add_u32 s94, s94, s28\ns_lshl_b32 s94, s94, 8\ns_add_u32 s94, s94, {s.k*0x80000}")
        e("buffer_store_dword v0, v1, s[60:63], s94 offen")
```

```python
from common import *
LDS=163840
WS_SZ=0x4000000; P2_OFF=0x3200000
FL=0x2800000; HF=FL; UF=FL+0x20000; ZF=FL+0x20400; XF=FL+0x21000; UF2=FL+0x22000; SF=FL+0x24000
OOB=0x7f000000
RAO=73728; XR=98304; PC=90112
XFR=112; ACC=48; FR=32; RA=3; NR=4
LOG2E=1.4426950408889634
NV=2
uid=[0]
def check_spin(e, d, vaddr, soff, imm, issue=True, sl=2):
    uid[0]+=1; u=uid[0]
    ld=f"buffer_load_dwordx2 v[{d}:{d+1}], v{vaddr}, s[24:27], {soff} offen offset:{imm} sc1"
    if issue: e(ld)
    e(f"v_cmp_eq_u64 vcc, v[{d}:{d+1}], v[{NV}:{NV+1}]")
    e(f"s_cmp_eq_u64 vcc, -1\ns_cbranch_scc1 POK{u}")
    e.raw(f"s_mov_b32 s53, 0\nPSP{u}:\n s_sleep {sl}\n {ld}\n s_add_u32 s53, s53, 1\n s_waitcnt vmcnt(0)\n v_cmp_eq_u64 vcc, v[{d}:{d+1}], v[{NV}:{NV+1}]\n s_cmp_ge_u32 s53, 0x40000\n s_cbranch_scc1 POK{u}\n s_nop 1\n s_cmp_eq_u64 vcc, -1\n s_cbranch_scc0 PSP{u}\nPOK{u}:")
def poll_issue(e, d, vaddr, soff, imm, tag=None):
    e(f"buffer_load_dwordx2 v[{d}:{d+1}], v{vaddr}, s[24:27], {soff} offen offset:{imm} sc1", tag=tag)
def nonce_issue(e, vz, NV=NV):
    e(f"global_load_dwordx2 v[{NV}:{NV+1}], v{vz}, s[100:101] sc1")
def nonce_check(e, vz, NV=NV):
    uid[0]+=1; u=uid[0]
    e(f"v_cmp_ne_u64 vcc, 0, v[{NV}:{NV+1}]")
    e(f"s_cmp_eq_u64 vcc, -1\ns_cbranch_scc1 NOK{u}")
    e.raw(f"s_mov_b32 s53, 0\nNSP{u}:\n s_sleep 2\n global_load_dwordx2 v[{NV}:{NV+1}], v{vz}, s[100:101] sc1\n s_add_u32 s53, s53, 1\n s_waitcnt vmcnt(0)\n v_cmp_ne_u64 vcc, 0, v[{NV}:{NV+1}]\n s_cmp_ge_u32 s53, 0x40000\n s_cbranch_scc1 NOK{u}\n s_nop 1\n s_cmp_eq_u64 vcc, -1\n s_cbranch_scc0 NSP{u}\nNOK{u}:")

def g1(e, mode, opt):
    ts=opt['TS']; H=(mode=='h')
    st = 9216 if H else 1152
    e("s_lshl_b32 s31, s29, 3\ns_add_u32 s31, s31, s28")
    e("s_mul_i32 s32, s31, 1152")
    for q in (1,2,3): e(f"s_add_u32 s{32+q}, s32, {q*8*64*1152}")
    e(f"s_lshl_b32 s36, s28, 13\ns_add_u32 s36, s36, {XR}")
    e("s_mul_i32 s43, s30, 384")
    e(f"s_and_b32 s41, s28, 3\ns_mul_i32 s37, s41, {16*st}\ns_lshr_b32 s42, s28, 2\ns_lshl_b32 s44, s42, 7\ns_add_u32 s37, s37, s44\ns_add_u32 s37, s37, s43")
    e(f"s_lshl_b32 s41, s41, 11\ns_cmp_eq_u32 s42, 0\ns_cselect_b32 s38, {RAO+8192}, 0\ns_cselect_b32 s40, 24576, 0\ns_add_u32 s38, s38, s41")
    e("v_and_b32 v1, 63, v0")
    e("v_lshrrev_b32 v4, 3, v1\nv_and_b32 v5, 7, v1\nv_lshrrev_b32 v6, 1, v4\nv_xor_b32 v5, v5, v6\nv_lshlrev_b32 v5, 4, v5")
    e("s_mov_b32 s41, 73728\nv_mul_lo_u32 v4, v4, s41\nv_add_u32 v2, v4, v5\nv_xor_b32 v3, 64, v2")
    e(f"v_lshrrev_b32 v5, 3, v1\nv_mul_u32_u24 v4, {st}, v5\nv_bfe_u32 v5, v1, 4, 1\nv_lshlrev_b32 v5, 2, v5\nv_and_b32 v6, 7, v1\nv_xor_b32 v6, v6, v5\nv_lshl_add_u32 v4, v6, 4, v4")
    e(f"v_lshrrev_b32 v5, 2, v1\nv_lshrrev_b32 v6, 4, v1\nv_xor_b32 v5, v5, v6\nv_and_b32 v5, 1, v5\nv_and_b32 v6, 3, v1\nv_lshlrev_b32 v6, 5, v6\nv_lshrrev_b32 v7, 5, v1\nv_lshl_add_u32 v7, v7, 4, v6\nv_lshl_add_u32 v7, v5, 30, v7")
    def group(c):
        def wd(eidx):
            def f(e):
                if eidx==0 and c>0:
                    e("s_add_u32 s38, s38, 8192")
                    if (c+1)%3==0: e("s_sub_u32 s38, s38, s40")
                e(f"s_add_u32 s41, s37, {(64*c+8*eidx)*st}")
                e(f"s_add_u32 m0, s38, {eidx*1024}")
                e("buffer_load_dwordx4 v4, s[20:23], s41 offen lds", tag=('G',c))
            return f
        def xd(q):
            def f(e):
                e.wait_lg_tag(('x',c-2))
                e(f"s_add_u32 m0, s36, {(c%2)*4096+q*1024-c*128 & 0xffffffff}")
                e(f"buffer_load_dwordx4 v{2+(q&1)}, s[16:19], s{32+q} offen offset:{c*128} lds", tag=('G',c))
            return f
        def gd(e): e(f"buffer_load_dwordx4 v[{16+4*(c%3)}:{19+4*(c%3)}], v7, s[12:15], 0 offen offset:{128*c}", tag=('G',c))
        return [wd(0),wd(1)]+[xd(q) for q in range(4)]+[gd]
    for f in group(0)[2:]+group(0)[:2]: f(e)
    for f in group(1)[2:]+group(1)[:2]: f(e)
    e("v_lshlrev_b32 v15, 4, v1")
    CP=opt.get('cp',4) if H else 0
    def pf(c):
        def f(e):
            e(f"buffer_load_dword v30, v28, s[16:19], s32 offen offset:{c*128}")
            e(f"s_add_u32 s41, s43, {64*c*9216}\nbuffer_load_dword v31, v29, s[20:23], s41 offen")
        return f
    if CP:
        e(f"s_lshr_b32 s41, s54, 2\ns_mul_i32 s41, s41, 6\nv_add_u32 v28, s41, v1\nv_min_u32 v28, 31, v28\ns_mov_b32 s41, 73728\nv_mul_lo_u32 v28, v28, s41\nv_cmp_gt_u32 vcc, 6, v1\nv_mov_b32 v31, {hex(OOB)}\nv_cndmask_b32 v28, v31, v28, vcc")
        e(f"s_and_b32 s41, s54, 3\ns_lshl_b32 s41, s41, 3\ns_add_u32 s41, s41, s28\ns_lshl_b32 s42, s41, 1\nv_mul_u32_u24 v29, 43, v1\nv_lshrrev_b32 v29, 7, v29\nv_mul_u32_u24 v30, 3, v29\nv_sub_u32 v30, v1, v30\nv_add_u32 v29, s42, v29\nv_mul_u32_u24 v29, 9216, v29\nv_lshl_add_u32 v29, v30, 7, v29\nv_cndmask_b32 v29, v31, v29, vcc")
        e(f"s_lshl_b32 s42, s41, 2\nv_add_u32 v5, s42, v1\nv_mul_u32_u24 v5, 9216, v5\nv_cmp_gt_u32 vcc, 4, v1\nv_cndmask_b32 v5, v31, v5, vcc")
        for c in range(2,CP): pf(c)(e)
    e("v_and_b32 v0, 31, v1\nv_lshrrev_b32 v6, 5, v1\nv_lshrrev_b32 v13, 1, v0\nv_and_b32 v13, 7, v13\nv_xor_b32 v13, v13, v6\nv_lshlrev_b32 v13, 4, v13\nv_lshlrev_b32 v0, 7, v0\nv_add_u32 v0, s36, v0")
    for kk in range(4): e(f"v_xor_b32 v{8+kk}, {32*kk}, v13\nv_add_u32 v{8+kk}, v{8+kk}, v0")
    e("v_lshrrev_b32 v0, 5, v1\nv_lshlrev_b32 v0, 10, v0\nv_bfe_u32 v6, v1, 2, 2\nv_lshl_add_u32 v0, v6, 7, v0\nv_bfe_u32 v6, v1, 3, 1\nv_lshl_add_u32 v0, v6, 6, v0\nv_bfe_u32 v6, v1, 4, 1\nv_lshl_add_u32 v0, v6, 5, v0\nv_and_b32 v6, 3, v1\nv_lshl_add_u32 v14, v6, 3, v0")
    e(f"v_add_u32 v12, {RAO}, v14\nv_xor_b32 v13, 64, v12\nv_mov_b32 v0, 0")
    if H:
        e("s_lshr_b32 s55, s3, 1\ns_lshr_b32 s42, s54, 2\ns_mul_i32 s45, s31, 294912\ns_mul_i32 s41, s55, 73728\ns_add_u32 s45, s45, s41\ns_lshl_b32 s41, s42, 11\ns_add_u32 s45, s45, s41")
        e(f"s_lshl_b32 s52, s31, 2\ns_add_u32 s52, s52, s55\ns_lshl_b32 s52, s52, 9\ns_lshl_b32 s41, s42, 3\ns_add_u32 s52, s52, s41\ns_add_u32 s52, s52, {HF}")
        e(f"s_mov_b32 s46, {hex(f32bits(-LOG2E))}")
    else:
        e(f"s_mul_i32 s45, s30, 12288\ns_mul_i32 s41, s31, 36864\ns_add_u32 s45, s45, s41\ns_add_u32 s45, s45, {U_OFF}")
    e(f"s_mul_i32 s47, s28, {8*st}\ns_add_u32 s47, s47, s43\ns_add_u32 s47, s47, 256\ns_lshl_b32 s48, s28, 10")
    steps=[(t,4*c+kk) for c in range(9) for kk in range(4) for t in range(3)]+[(t,k) for t in (3,4,5) for k in range(36)]
    slot={0:0,1:1,2:2,3:3,4:0,5:1}
    def frag_read(e,m):
        t,k=steps[m]; r=FR+4*(m%NR)
        tag=None
        if t<2: base,off,tag=12+t,((k//4+1)%3)*8192+(k%4)*2048,('a',k//4)
        else:
            base={2:14,3:14,4:12,5:13}[t]; off=(k%32)*2048
            if t==3: tag='b'
            if k==32: e(f"v_add_u32 v{base}, 65536, v{base}")
            if k==0 and t==3: e(f"v_subrev_u32 v14, {RAO}, v13")
            if k==0 and t>3: e(f"v_add_u32 v{base}, {PC-RAO}, v{base}")
        e(f"ds_read_b64_tr_b16 v[{r}:{r+1}], v{base} offset:{off}",tag=tag)
        e(f"ds_read_b64_tr_b16 v[{r+2}:{r+3}], v{base} offset:{off+512}",tag=tag)
    def xreads(e,c):
        for kk in range(4):
            r=XFR+4*(4*c+kk); e(f"ds_read_b128 v[{r}:{r+3}], v{8+kk} offset:{(c%2)*4096}", tag=('x',c))
    def tdma(i):
        def f(e):
            e(f"s_add_u32 s41, s47, {i*64*st}\ns_add_u32 m0, s48, {PC+i*8192}")
            e("buffer_load_dwordx4 v4, s[20:23], s41 offen lds", tag='T')
        return f
    def epi(t):
        a=ACC+16*slot[t]; L=[]
        for half in range(2):
            P=16+4*((2*t+half)%2)
            if H:
                for pp in range(2):
                    x=[a+8*half+4*pp+u for u in range(4)]; tt=[24+4*pp+u for u in range(4)]
                    L+=[f"v_mul_f32 v{tt[u]}, s46, v{x[u]}" for u in range(4)]
                    L+=[f"v_exp_f32 v{tt[u]}, v{tt[u]}" for u in range(4)]
                    L+=[f"v_fma_f32 v{tt[u]}, v{tt[u]}, v6, v6" for u in range(4)]
                    L+=[f"v_rcp_f32 v{tt[u]}, v{tt[u]}" for u in range(4)]
                    L+=[f"v_mul_f32 v{tt[u]}, v{x[u]}, v{tt[u]}" for u in range(4)]
                    L+=[f"v_cvt_pk_bf16_f32 v{P+2*pp+u}, v{tt[2*u]}, v{tt[2*u+1]}" for u in range(2)]
                def stf(e,P=P,half=half):
                    if half==0: e(f"s_add_u32 s51, s45, {t*12288}")
                    e(f"buffer_store_dwordx4 v[{P}:{P+3}], v15, s[24:27], s51 offen offset:{half*1024} {opt.get('hsc','sc1').replace('-','').replace('_',' ')}", tag=('H',t))
                L.append(stf)
            else:
                for p in range(4): L.append(f"v_cvt_pk_bf16_f32 v{P+p}, v{a+8*half+2*p}, v{a+8*half+2*p+1}")
                L.append(f"s_add_u32 s51, s45, {t*2048}\nbuffer_store_dwordx4 v[{P}:{P+3}], v15, s[24:27], s51 offen offset:{half*1024} sc1")
        return L
    def flag(t):
        def f(e):
            e.wait_vm_tag(('H',t))
            e(f"buffer_store_dwordx2 v[{NV}:{NV+1}], v8, s[24:27], s52 offen offset:{t*48} sc1")
        return f
    fill={m:[] for m in range(len(steps)+1)}
    for c in range(2,9):
        gp=[int(x) for x in str(opt.get('gp','1122334'))]
        for j,f in enumerate(group(c)): fill[max(12*(c-2)-3+gp[j],0)].append(f)
        if CP and 2<=c+CP-2<9: fill[max(12*(c-2)-3+gp[6],0)].append(pf(c+CP-2))
    if CP: fill[opt.get('cp3',40)].append("buffer_load_dword v5, v5, s[20:23], s43 offen offset:256")
    if H and opt.get('tp',0):
        fill[opt['tp']].append("s_and_b32 s41, s54, 3\ns_lshl_b32 s41, s41, 3\ns_add_u32 s41, s41, s28\ns_mul_i32 s41, s41, 18\nv_min_u32 v5, 17, v1\nv_add_u32 v5, s41, v5\nv_mul_u32_u24 v5, 9216, v5\nbuffer_load_dword v5, v5, s[20:23], s43 offen offset:256")
    for j,p in enumerate(spread(9,98,opt.get('te',116))): fill[p].append(tdma(j))
    for c in range(9):
        for kk in range(4):
            xr=XFR+4*(4*c+kk); d=96+4*kk; a=16+4*(c%3)
            fill[12*c+2+2*kk].append(f"v_mfma_f32_16x16x32_bf16 v[{d}:{d+3}], v[{a}:{a+3}], v[{xr}:{xr+3}], {f'v[{d}:{d+3}]' if c else '0'}")
    fill[opt.get('np',74)].append(lambda e: nonce_issue(e,0))
    if not H and opt.get('wp',72):
        fill[20].append(lambda e: nonce_issue(e,0,28))
        fill[21].append(f"s_or_b32 s41, s28, s30\ns_cmp_eq_u32 s41, 0\ns_cselect_b32 s41, 0, {hex(OOB)}\nv_mov_b32 v31, {hex(OOB)}\nv_mov_b32 v30, s41\nv_cmp_eq_u32 vcc, 0, v1\nv_cndmask_b32 v30, v31, v30, vcc\ns_lshl_b32 s49, s3, 8\ns_add_u32 s49, s49, {SF}")
        fill[opt.get('wp',72)]+=[lambda e: nonce_check(e,0,28),"buffer_store_dwordx2 v[28:29], v30, s[24:27], s49 offen sc1"]
    fill[96].append(f"v_cmp_eq_u32 vcc, 0, v1\nv_mov_b32 v9, {hex(OOB)}\nv_cndmask_b32 v8, v9, v0, vcc")
    zf=["v_add_f32 v5, v96, v101\nv_add_f32 v6, v106, v111\nv_add_f32 v5, v5, v6"]
    if H: zf+=[f"v_mul_f32 v5, {hex(f32bits(LOG2E))}, v5","v_exp_f32 v5, v5","v_add_f32 v5, 1.0, v5",f"v_min_f32 v6, {hex(f32bits(1e38))}, v5"]
    else:
        zf+=[f"v_mul_f32 v5, {hex(f32bits(-LOG2E))}, v5","v_exp_f32 v5, v5","v_add_f32 v5, 1.0, v5","v_rcp_f32 v6, v5",
             "v_bfe_u32 v10, v1, 2, 1\nv_lshlrev_b32 v10, 6, v10\nv_bfe_u32 v11, v1, 3, 2\nv_lshl_add_u32 v10, v11, 4, v10\nv_and_b32 v11, 3, v1\nv_lshl_add_u32 v10, v11, 2, v10\nv_lshrrev_b32 v11, 5, v1\nv_lshl_add_u32 v10, v11, 30, v10",
             f"s_lshl_b32 s41, s31, 7\ns_add_u32 s41, s41, {G_OFF}\nbuffer_store_dword v6, v10, s[24:27], s41 offen sc1"]
    fill[107]+=zf[:1]; fill[108]+=zf[1:]
    fill[108].append(lambda e: nonce_check(e,0))
    E0=opt.get('e0',109); E1=opt.get('e1',216) if H else 216
    NI=6-opt.get('nd',1) if H else 5
    ops=[o for t in range(NI) for o in epi(t)]
    pos=spread(len(ops),E0,E1)
    nn=len(ops)//NI
    assert pos[nn-1]<144 and pos[2*nn-1]<180 and pos[3*nn]>=145 and (NI<5 or pos[4*nn]>=181)
    for o,p in zip(ops,pos): fill[p].append(o)
    FORK=180
    if H and 0<opt.get('sp',144)<180: fill[opt.get('sp',144)].append(lambda e: e.raw("s_cmp_lt_u32 s28, 4\n s_cbranch_scc1 SPX\n s_setprio 1\nSPX:"))
    late=[]
    if H:
        FD=opt.get('fd',20); n=len(ops)//NI
        for t in range(NI):
            p=pos[(t+1)*n-1]+FD
            if p<216: fill[p].append(flag(t))
            else: late.append(t)
        late+=list(range(NI,6))
        def pfw(e):
            srd(e,12,96,4608*1152)
            pcptr(e,16,"GTR",""); e(f"s_mov_b32 s18, {576*1152}\ns_mov_b32 s19, 0x20000")
            if opt.get('pw2',3)==2:
                e(f"s_lshl_b32 s41, s54, 3\ns_add_u32 s41, s41, s28\ns_mul_i32 s42, s41, 6912\ns_mul_i32 s44, s55, {1152*1152}\ns_add_u32 s42, s42, s44\nv_min_u32 v7, 53, v1\nv_lshlrev_b32 v7, 7, v7")
                e("buffer_load_dword v7, v7, s[12:15], s42 offen")
            if opt.get('pw2',3) in (1,3):
                e(f"s_and_b32 s41, s28, 3\ns_lshl_b32 s42, s54, 2\ns_add_u32 s41, s41, s42\ns_lshr_b32 s42, s41, 4\ns_mul_i32 s42, s42, {192*1152}\ns_and_b32 s41, s41, 15\ns_mul_i32 s41, s41, 2304\ns_add_u32 s42, s42, s41\ns_mul_i32 s56, s55, {1152*1152}\ns_add_u32 s56, s56, s42")
                e(f"s_lshr_b32 s41, s28, 2\ns_mul_i32 s41, s41, 36864\ns_add_u32 s41, s41, s56\nv_min_u32 v7, 17, v1\nv_lshlrev_b32 v7, 7, v7")
                e("buffer_load_dword v7, v7, s[12:15], s41 offen")
        fill[opt.get('pwp',75)].append(pfw)
        if opt.get('pw2',3)==3:
            for z,p in enumerate(str(opt.get('pq','135,165')).split(',')):
                fill[int(p)].append(f"s_lshr_b32 s41, s28, 2\ns_mul_i32 s41, s41, 36864\ns_add_u32 s41, s41, s56\ns_add_u32 s41, s41, {(z+1)*73728}\nv_min_u32 v7, 17, v1\nv_lshlrev_b32 v7, 7, v7\nbuffer_load_dword v7, v7, s[12:15], s41 offen")
    def run(e, lo, hi, fl):
        for m in range(lo,hi):
            t,k=steps[m]; mr=m+RA
            if mr<108 and mr%12==0:
                c=mr//12; e.wait_vm_tag(('G',c)); e.wait_lg_tag(('a',c-1)); e("s_barrier"); xreads(e,c)
            if m==97: e("s_barrier")
            if mr==144: e.wait_vm_tag('T'); e.wait_lg_tag('b'); e("s_barrier")
            if m in (36,72,108,144,180): ts(e,{36:2,72:3,108:4,144:5,180:6}[m])
            if mr<len(steps): frag_read(e,mr)
            a=ACC+16*slot[t]; r=FR+4*(m%NR); xr=XFR+4*k
            cin = f"v[{a}:{a+15}]" if k>0 else "0"
            if H: e(f"v_mfma_f32_32x32x16_bf16 v[{a}:{a+15}], v[{r}:{r+3}], v[{xr}:{xr+3}], {cin}")
            else: e(f"v_mfma_f32_32x32x16_bf16 v[{a}:{a+15}], v[{xr}:{xr+3}], v[{r}:{r+3}], {cin}")
            for f in fill[m]+fl.get(m,[]):
                if callable(f): f(e)
                else: e(f)
    e.wait_vm_tag(('G',0)); e("s_barrier"); ts(e,1); xreads(e,0)
    for m in range(RA): frag_read(e,m)
    if not H:
        run(e,0,216,{})
        ts(e,7)
        for o in epi(5): e(o)
        e("s_waitcnt vmcnt(0)"); ts(e,8); e("s_barrier")
        e(f"s_lshl_b32 s41, s30, 11\ns_lshl_b32 s42, s29, 8\ns_add_u32 s41, s41, s42\ns_add_u32 s41, s41, {UF2}")
        e("s_cmp_lg_u32 s28, 0\ns_cbranch_scc1 U_NOFLAG")
        e(f"buffer_store_dwordx2 v[{NV}:{NV+1}], v8, s[24:27], s41 offen sc1")
        e.label("U_NOFLAG")
        if opt.get('gtp',1):
            pcptr(e,16,"GTR",""); e(f"s_mov_b32 s18, {576*1152}\ns_lshr_b32 s41, s3, 1\ns_mul_i32 s41, s41, {144*1152}\ns_lshl_b32 s42, s30, 3\ns_add_u32 s42, s42, s28\ns_mul_i32 s42, s42, 6912\ns_add_u32 s41, s41, s42")
            e("v_min_u32 v7, 53, v1\nv_lshlrev_b32 v7, 7, v7\nbuffer_load_dword v7, v7, s[16:19], s41 offen\ns_waitcnt vmcnt(0)")
        ts.end(e,9); e("s_endpgm")
        return [e]
    run(e,0,FORK,{})
    e("s_cmp_ge_u32 s28, 4\ns_cbranch_scc1 G2_LOAD")
    el=e.fork(); el.label("G2_LOAD")
    def epi5(e):
        for o in epi(5):
            if callable(o): o(e)
            else: e(o)
    DE=opt.get('de',1)
    dops=[o for t in range(NI,6) for o in epi(t)]
    (g2_compute16 if opt.get('m16',1) else g2_compute)(e,opt,lambda: (run(e,FORK,216,{}),ts(e,7),None if DE else epi5(e)),[flag(t) for t in late],dops)
    g2_loader(el,opt,lambda fl: run(el,FORK,216,fl),dops,{t:flag(t) for t in late})
    return [e,el]

TSZ=4096; SL=40960; NCH=21
def g2_ids(e):
    e("s_and_b32 s29, s3, 1\ns_lshl_b32 s29, s29, 3\ns_and_b32 s42, s54, 7\ns_add_u32 s29, s29, s42\ns_lshr_b32 s30, s54, 3")
def g2_compute(e,opt,finish_g1,lateflags,dops):
    ts=opt['TS']
    finish_g1()
    g2_ids(e)
    B0=32; HB=36; ZB=40; B1=44
    e("v_lshrrev_b32 v9, 5, v1\nv_lshlrev_b32 v9, 8, v9\nv_bfe_u32 v10, v1, 2, 2\nv_lshlrev_b32 v10, 6, v10\nv_add_u32 v9, v9, v10")
    e(f"v_and_b32 v10, 1, v1\nv_lshlrev_b32 v10, 5, v10\nv_add_u32 v9, v9, v10\nv_bfe_u32 v10, v1, 4, 1\nv_lshlrev_b32 v10, 4, v10\nv_add_u32 v9, v9, v10\nv_bfe_u32 v10, v1, 1, 1\nv_lshlrev_b32 v10, 3, v10\nv_add_u32 v{B0}, v9, v10")
    e(f"s_lshl_b32 s42, s28, 12\ns_add_u32 s42, s42, {6*TSZ}\nv_add_u32 v{HB}, s42, v15\nv_add_u32 v{ZB}, s42, v{B0}")
    e(f"v_and_b32 v9, 63, v{B0}\nv_and_b32 v10, 0xffffffc0, v{B0}\nv_lshl_add_u32 v9, v10, 1, v9\nv_bfe_u32 v10, v1, 3, 1\nv_lshl_add_u32 v{B0}, v10, 6, v9\nv_xor_b32 v{B1}, 64, v{B0}")
    for s in range(1,4 if not opt.get('t23',1) else 1): e(f"v_add_u32 v{B0+s}, {s*SL}, v{B0}\nv_add_u32 v{B1+s}, {s*SL}, v{B1}\nv_add_u32 v{HB+s}, {s*SL}, v{HB}\nv_add_u32 v{ZB+s}, {s*SL}, v{ZB}")
    AC=160; F2=64; HFr=16; RA2=opt.get('ra2',6); NR2=RA2+1
    steps=[(n,t) for n in range(81) for t in range(6)]
    T23=opt.get('t23',1); TAG=opt.get('tag',1)
    WB=96; HF2=112; WF=128; NW=RA2//2+1
    if T23:
        e(f"s_and_b32 s43, s28, 1\ns_lshl_b32 s44, s43, 6\nv_xor_b32 v9, s44, v{B0}\nv_xor_b32 v10, 64, v9\ns_lshl_b32 s44, s43, 13\nv_add_u32 v{WB}, s44, v9\ns_lshl_b32 s44, s43, 14\nv_add_u32 v{WB+4}, s44, v10\ns_lshl_b32 s44, s43, 13\ns_add_u32 s44, s44, 8192\nv_add_u32 v{WB+8}, s44, v9")
        e(f"s_lshl_b32 s44, s43, 12\nv_subrev_u32 v{HB}, s44, v{HB}\nv_subrev_u32 v{ZB}, s44, v{ZB}")
        for c in range(3):
            for q in range(1,4): e(f"v_add_u32 v{WB+4*c+q}, {q*SL}, v{WB+4*c}")
        for q in range(1,4): e(f"v_add_u32 v{HB+q}, {q*SL}, v{HB}\nv_add_u32 v{ZB+q}, {q*SL}, v{ZB}")
    def regs23(m):
        n,t=steps[m]
        return WF+4*((3*n+t//2)%NW), HF2+8*(n%2)+4*(t&1), (t&1)*3+t//2
    def frag_read23(m):
        n,t=steps[m]; q=(n//4)%4; o=(n%4)*1024; r,hr,_=regs23(m)
        if t<2:
            oh=o+t*4096
            if n<72: e(f"ds_read_b128 v[{hr}:{hr+3}], v{HB+q} offset:{oh}")
            else: e(f"ds_read_b64_tr_b16 v[{hr}:{hr+1}], v{ZB+q} offset:{oh}\nds_read_b64_tr_b16 v[{hr+2}:{hr+3}], v{ZB+q} offset:{oh+512}")
        if t%2==0:
            b=WB+4*(t//2)+q
            e(f"ds_read_b64_tr_b16 v[{r}:{r+1}], v{b} offset:{2*o}")
            e(f"ds_read_b64_tr_b16 v[{r+2}:{r+3}], v{b} offset:{2*o+1024}")
    def frag_read(m):
        if T23: return frag_read23(m)
        n,t=steps[m]; q=(n//4)%4; o=(n%4)*1024; r=F2+4*(m%NR2)
        if t==0:
            hr=HFr+4*(n%2)
            if n<72: e(f"ds_read_b128 v[{hr}:{hr+3}], v{HB+q} offset:{o}")
            else: e(f"ds_read_b64_tr_b16 v[{hr}:{hr+1}], v{ZB+q} offset:{o}\nds_read_b64_tr_b16 v[{hr+2}:{hr+3}], v{ZB+q} offset:{o+512}")
        b=(B1 if t&1 else B0)+q; o=2*o+(t//2)*8192
        e(f"ds_read_b64_tr_b16 v[{r}:{r+1}], v{b} offset:{o}")
        e(f"ds_read_b64_tr_b16 v[{r+2}:{r+3}], v{b} offset:{o+1024}")
    def xsetup(e):
        e("s_mul_i32 s44, s29, 3\ns_add_u32 s44, s44, s30")
        e(f"s_mul_i32 s45, s44, {16*12288}\ns_mul_i32 s42, s28, 3072\ns_add_u32 s45, s45, s42\ns_add_u32 s45, s45, {P_OFF}\ns_mul_i32 s42, s55, {4*12288}\ns_add_u32 s46, s45, s42\ns_mul_i32 s42, s55, 12288\ns_add_u32 s45, s45, s42")
        if TAG:
            e(f"s_lshl_b32 s45, s44, 18\ns_lshl_b32 s42, s28, 12\ns_add_u32 s45, s45, s42\ns_add_u32 s45, s45, {P2_OFF}\ns_lshl_b32 s42, s55, 16\ns_add_u32 s46, s45, s42\ns_lshl_b32 s42, s55, 14\ns_add_u32 s45, s45, s42")
            e(f"v_lshlrev_b32 v5, 13, v{NV+1}\nv_xor_b32 v51, v5, v{NV}")
            for p in range(1,12): e(f"v_mov_b32 v{51+4*p}, v51")
        e(f"s_lshl_b32 s47, s44, 2\ns_add_u32 s47, s47, s28\ns_lshl_b32 s47, s47, 7\ns_add_u32 s47, s47, {XF}\ns_lshl_b32 s42, s55, 3\ns_add_u32 s49, s47, s42")
        if T23: e("s_lshl_b32 s48, s29, 2\ns_and_b32 s42, s28, 2\ns_add_u32 s48, s48, s42\ns_mul_i32 s48, s48, 1152\ns_mul_i32 s42, s30, 384\ns_add_u32 s48, s48, s42\ns_and_b32 s42, s28, 1\ns_mul_i32 s42, s42, 192\ns_add_u32 s48, s48, s42")
        else: e("s_lshl_b32 s48, s29, 2\ns_add_u32 s48, s48, s28\ns_mul_i32 s48, s48, 1152\ns_mul_i32 s42, s30, 384\ns_add_u32 s48, s48, s42")
        e("v_and_b32 v5, 31, v1\ns_mov_b32 s42, 73728\nv_mul_lo_u32 v7, v5, s42\nv_lshrrev_b32 v6, 5, v1\nv_lshl_add_u32 v7, v6, 5, v7")
        e("v_min_u32 v5, 2, v1\nv_cmp_le_u32 vcc, s55, v5\nv_addc_co_u32 v5, vcc, 0, v5, vcc\nv_lshlrev_b32 v5, 3, v5")
        srd(e,20,98,2048*1152)
    fl={}
    LF=[int(v) for v in str(opt.get('lf','50,100,190')).split(',')][-len(lateflags):]
    for p,f in zip(LF,lateflags): fl[p]=f
    D0,D1=opt.get('d0',1),opt.get('d1',95); assert D1<200 and LF[-1]>D1 and (len(dops)<100 or LF[-2]>(D0+D1)//2)
    fl2={}
    for o,p in zip(dops,spread(len(dops),D0,D1)): fl2.setdefault(p,[]).append(o)
    fl[200]=xsetup
    if opt.get('pw2',3)==1:
        e("v_min_u32 v48, 17, v1\nv_lshlrev_b32 v48, 7, v48")
        for t in range(2,6):
            fl[max(72*(t-2)+opt.get('jp',2),t)]=lambda e,t=t: e(f"s_add_u32 s42, s56, {t*36864}\nbuffer_load_dword v{47+t}, v48, s[12:15], s42 offen")
    e("s_barrier"); ts(e,8)
    for m in range(RA2): frag_read(m)
    for m,(n,t) in enumerate(steps):
        mr=m+RA2
        if m in (144,288,432): ts(e,{144:9,288:10,432:11}[m])
        if mr<len(steps):
            if mr%24==0: e("s_barrier")
            frag_read(mr)
        a=AC+16*t; r=F2+4*(m%NR2); hr=HFr+4*(n%2)
        if T23: r,hr,ti=regs23(m); a=AC+16*ti
        cin=f"v[{a}:{a+15}]" if n>0 else "0"
        e(f"v_mfma_f32_32x32x16_bf16 v[{a}:{a+15}], v[{r}:{r+3}], v[{hr}:{hr+3}], {cin}")
        for o in fl2.get(m,[]):
            if callable(o): o(e)
            else: e(o)
        if m in fl: fl[m](e)
    ts(e,12)
    e("s_cmp_eq_u32 s55, 1\ns_cbranch_scc1 XV1\ns_cmp_eq_u32 s55, 2\ns_cbranch_scc1 XV2\ns_cmp_eq_u32 s55, 3\ns_cbranch_scc1 XV3")
    txt=[]
    for ks in range(4):
        x=e.fork()
        if ks: x.label(f"XV{ks}")
        if TAG:
            oth=[d for d in range(4) if d!=ks]
            for i,d in enumerate(oth):
                x(f"s_add_u32 s42, s45, {d*65536}")
                for p in range(4):
                    Q=48+16*i+4*p
                    for z in range(3):
                        a=AC+24*d+2*(3*p+z); x(f"v_cvt_pk_bf16_f32 v{Q+z}, v{a}, v{a+1}")
                    x(f"buffer_store_dwordx4 v[{Q}:{Q+3}], v15, s[24:27], s42 offen offset:{p*1024} sc1")
            lds=[]
            for i,sr in enumerate(oth):
                x(f"s_add_u32 s{50+i}, s46, {sr*16384}")
                L=[f"buffer_load_dwordx4 v[{96+16*i+4*p}:{99+16*i+4*p}], v15, s[24:27], s{50+i} offen offset:{p*1024} sc1" for p in range(4)]
                for l in L: x(l, tag=('R',i))
                lds.append(L)
            for i in range(3):
                R=96+16*i; uid[0]+=1; u=uid[0]
                x.wait_vm_tag(('R',i))
                chk=f"v_xor_b32 v16, v51, v{R+3}\n v_xor_b32 v17, v51, v{R+7}\n v_xor_b32 v18, v51, v{R+11}\n v_xor_b32 v19, v51, v{R+15}\n v_or3_b32 v16, v16, v17, v18\n v_or_b32 v16, v16, v19\n v_cmp_eq_u32 vcc, 0, v16\n"
                x(chk)
                x(f"s_cmp_eq_u64 vcc, -1\ns_cbranch_scc1 XOK{u}")
                x.raw(f"s_mov_b32 s53, 0\nXSP{u}:\n s_sleep {opt.get('xs',1)}\n "+"\n ".join(lds[i])+f"\n s_add_u32 s53, s53, 1\n s_waitcnt vmcnt(0)\n {chk} s_cmp_ge_u32 s53, 0x40000\n s_cbranch_scc1 XOK{u}\n s_nop 1\n s_cmp_eq_u64 vcc, -1\n s_cbranch_scc0 XSP{u}\nXOK{u}:")
                for k in range(12):
                    P=R+4*(k//3)+k%3; a=AC+24*ks+2*k; t=16+2*(k%4)
                    x(f"v_lshlrev_b32 v{t}, 16, v{P}\nv_and_b32 v{t+1}, 0xffff0000, v{P}\nv_add_f32 v{a}, v{a}, v{t}\nv_add_f32 v{a+1}, v{a+1}, v{t+1}")
                    if i==2 and k%4==3:
                        uu=k//4; U=3*ks+uu; a=AC+8*U; Q=32+4*uu
                        for p in range(4): x(f"v_cvt_pk_bf16_f32 v{Q+p}, v{a+2*p}, v{a+2*p+1}")
                        x(f"buffer_store_dwordx4 v[{Q}:{Q+3}], v7, s[20:23], s48 offen offset:{((U//6)*1152+((U//2)%3)*64 if T23 else (U//2)*64)+(U%2)*16}")
            ts.end(x,13); x("s_endpgm")
            txt.append(x.text()); continue
        i=0
        for u in range(12):
            d=u//3
            if d==ks: continue
            a=AC+8*u; P=64+4*i; i+=1
            for p in range(4): x(f"v_cvt_pk_bf16_f32 v{P+p}, v{a+2*p}, v{a+2*p+1}")
            if u%3==0: x(f"s_add_u32 s42, s45, {d*4*12288}")
            x(f"buffer_store_dwordx4 v[{P}:{P+3}], v15, s[24:27], s42 offen offset:{(u%3)*1024} sc1")
        x("s_waitcnt vmcnt(0)")
        x(f"buffer_store_dwordx2 v[{NV}:{NV+1}], v8, s[24:27], s49 offen sc1")
        check_spin(x,10,5,"s47",0)
        i=0
        for s in range(4):
            if s==ks: continue
            x(f"s_add_u32 s42, s46, {s*12288}")
            for u in range(3):
                P=112+4*(3*i+u); x(f"buffer_load_dwordx4 v[{P}:{P+3}], v15, s[24:27], s42 offen offset:{u*1024} sc1")
            i+=1
        for i in range(3):
            for u in range(3):
                a=AC+8*(3*ks+u); P=112+4*(3*i+u)
                for p in range(4):
                    x(f"v_lshlrev_b32 v{16+2*p}, 16, v{P+p}\nv_and_b32 v{17+2*p}, 0xffff0000, v{P+p}")
                for p in range(8): x(f"v_add_f32 v{a+p}, v{a+p}, v{16+p}")
                if i==2:
                    Q=64+4*u; U=3*ks+u
                    for p in range(4): x(f"v_cvt_pk_bf16_f32 v{Q+p}, v{a+2*p}, v{a+2*p+1}")
                    x(f"buffer_store_dwordx4 v[{Q}:{Q+3}], v7, s[20:23], s48 offen offset:{((U//6)*1152+((U//2)%3)*64 if T23 else (U//2)*64)+(U%2)*16}")
        ts.end(x,13); x("s_endpgm")
        txt.append(x.text())
    e.raw('\n'.join(txt))
def g2_compute16(e,opt,finish_g1,lateflags,dops):
    ts=opt['TS']
    finish_g1()
    g2_ids(e)
    WB=96; HB=108; ZB=110; HF2=112; WF=144; AC=160
    e("v_lshrrev_b32 v9, 5, v1\nv_lshlrev_b32 v11, 10, v9\nv_bfe_u32 v10, v1, 2, 3\nv_lshlrev_b32 v12, 7, v10\nv_lshl_add_u32 v12, v9, 11, v12")
    e("v_bfe_u32 v13, v1, 3, 1\nv_lshl_add_u32 v12, v13, 6, v12\nv_bfe_u32 v13, v1, 4, 1\nv_lshl_add_u32 v12, v13, 5, v12\nv_and_b32 v14, 3, v1\nv_lshl_add_u32 v12, v14, 3, v12")
    e("s_and_b32 s43, s28, 1\ns_lshl_b32 s44, s43, 6\nv_xor_b32 v12, s44, v12")
    for mi in range(6):
        e(f"v_xor_b32 v{WB+2*mi}, {32*(mi&3)}, v12\ns_mul_i32 s44, s43, {8192*(((mi+6)>>2)-(mi>>2))}\ns_add_u32 s44, s44, {8192*(mi>>2)}\nv_add_u32 v{WB+2*mi}, s44, v{WB+2*mi}\nv_add_u32 v{WB+2*mi+1}, {2*SL}, v{WB+2*mi}")
    e(f"s_and_b32 s42, s28, 2\ns_lshl_b32 s42, s42, 12\ns_add_u32 s42, s42, {6*TSZ}\nv_add_u32 v11, s42, v11")
    e(f"v_and_b32 v14, 15, v1\nv_lshl_add_u32 v14, v13, 5, v14\nv_lshl_add_u32 v{HB}, v14, 4, v11\nv_add_u32 v{HB+1}, {2*SL}, v{HB}")
    e(f"v_lshl_add_u32 v11, v10, 6, v11\nv_and_b32 v14, 1, v1\nv_lshl_add_u32 v11, v14, 5, v11\nv_bfe_u32 v14, v1, 1, 1\nv_lshl_add_u32 v{ZB}, v14, 3, v11\nv_add_u32 v{ZB+1}, {2*SL}, v{ZB}")
    NS=41; M=24*NS; LA=12
    rd={}
    def add(p,t): rd.setdefault(p,[]).append(t)
    for sg in range(NS):
        q=(sg//2)%4; so=(q&1)*SL; sl=sg%2; last=(sg==40)
        for mi in range(6):
            f=6*sg+mi; r=WF+4*(f%4); b=WB+2*mi+(q>>1); o=so+4096*sl
            add(4*f-LA,f"ds_read_b64_tr_b16 v[{r}:{r+1}], v{b} offset:{o}")
            if not last: add(4*f-LA+1,f"ds_read_b64_tr_b16 v[{r+2}:{r+3}], v{b} offset:{o+1024}")
        for ni in range(4):
            r=HF2+16*(sg%2)+4*ni; p=24*sg-LA+(2,3,6,7)[ni]; o=so+2048*sl+4096*(ni>>1)
            if sg<36: add(p,f"ds_read_b128 v[{r}:{r+3}], v{HB+(q>>1)} offset:{o+256*(ni&1)}")
            else:
                add(p,f"ds_read_b64_tr_b16 v[{r}:{r+1}], v{ZB+(q>>1)} offset:{o+16*(ni&1)}")
                if not last: add(p,f"ds_read_b64_tr_b16 v[{r+2}:{r+3}], v{ZB+(q>>1)} offset:{o+16*(ni&1)+512}")
    def xsetup(e):
        e("s_mul_i32 s44, s29, 3\ns_add_u32 s44, s44, s30")
        e(f"s_lshl_b32 s45, s44, 18\ns_lshl_b32 s42, s28, 12\ns_add_u32 s45, s45, s42\ns_add_u32 s45, s45, {P2_OFF}\ns_lshl_b32 s42, s55, 16\ns_add_u32 s46, s45, s42\ns_lshl_b32 s42, s55, 14\ns_add_u32 s45, s45, s42")
        e("s_lshl_b32 s48, s29, 2\ns_and_b32 s42, s28, 2\ns_add_u32 s48, s48, s42\ns_lshr_b32 s42, s55, 1\ns_add_u32 s48, s48, s42\ns_mul_i32 s48, s48, 1152\ns_mul_i32 s42, s30, 384\ns_add_u32 s48, s48, s42\ns_and_b32 s42, s28, 1\ns_mul_i32 s42, s42, 192\ns_add_u32 s48, s48, s42")
        e(f"s_and_b32 s42, s55, 1\ns_mul_i32 s42, s42, {16*73728}\ns_add_u32 s48, s48, s42")
        srd(e,20,98,2048*1152)
    xv=[f"v_lshlrev_b32 v5, 13, v{NV+1}",f"v_xor_b32 v51, v5, v{NV}"]+[f"v_mov_b32 v{51+4*p}, v51" for p in range(1,12)]
    xv+=["v_and_b32 v5, 15, v1","s_mov_b32 s42, 73728\nv_mul_lo_u32 v7, v5, s42","v_bfe_u32 v5, v1, 4, 1","v_lshl_add_u32 v7, v5, 5, v7","v_lshrrev_b32 v5, 5, v1","v_lshl_add_u32 v7, v5, 4, v7"]
    xv2=["v_lshrrev_b32 v5, 5, v1","v_lshlrev_b32 v6, 10, v5"]+[f"v_sub_u32 v{WB+2*mi}, v{WB+2*mi}, v6" for mi in range(6)]+["v_lshlrev_b32 v6, 9, v5",f"v_sub_u32 v{ZB}, v{ZB}, v6"]
    fl={}
    def addf(p,o): fl.setdefault(p,[]).append(o)
    LF=[int(v) for v in str(opt.get('lf','50,100,190')).split(',')][-len(lateflags):]
    D0,D1=opt.get('d0',1),opt.get('d1',95); assert D1<200 and LF[-1]>D1 and (len(dops)<100 or LF[-2]>(D0+D1)//2)
    for o,p in zip(dops,spread(len(dops),2*D0,2*D1)): addf(p,o)
    for p,f in zip(LF,lateflags): addf(2*p,f)
    addf(500,xsetup)
    for i,o in enumerate(xv): addf(504+2*i,o)
    for i,o in enumerate(xv2): addf(24*36+4+2*i,o)
    e("s_barrier"); ts(e,8)
    for p in range(-LA,0):
        for t in rd.get(p,[]): e(t)
    for m in range(M):
        sg,mi,ni=m//24,(m%24)//4,m%4
        if m in (288,576,864): ts(e,{288:9,576:10,864:11}[m])
        if (m+LA)%48==0 and m+LA<M: e("s_barrier")
        for t in rd.get(m,[]): e(t)
        a=AC+4*(6*ni+mi); r=WF+4*((6*sg+mi)%4); hr=HF2+16*(sg%2)+4*ni
        cin=f"v[{a}:{a+3}]" if sg>0 else "0"
        if sg<40: e(f"v_mfma_f32_16x16x32_bf16 v[{a}:{a+3}], v[{r}:{r+3}], v[{hr}:{hr+3}], {cin}")
        else: e(f"v_mfma_f32_16x16x16_bf16 v[{a}:{a+3}], v[{r}:{r+1}], v[{hr}:{hr+1}], {cin}")
        for o in fl.get(m,[]):
            if callable(o): o(e)
            else: e(o)
    ts(e,12)
    e("s_cmp_eq_u32 s55, 1\ns_cbranch_scc1 XV1\ns_cmp_eq_u32 s55, 2\ns_cbranch_scc1 XV2\ns_cmp_eq_u32 s55, 3\ns_cbranch_scc1 XV3")
    txt=[]
    for ks in range(4):
        x=e.fork()
        if ks: x.label(f"XV{ks}")
        oth=[d for d in range(4) if d!=ks]
        for i,d in enumerate(oth):
            x(f"s_add_u32 s42, s45, {d*65536}")
            for p in range(4):
                Q=48+16*i+4*p
                for z in range(3):
                    a=AC+24*d+2*(3*p+z); x(f"v_cvt_pk_bf16_f32 v{Q+z}, v{a}, v{a+1}")
                x(f"buffer_store_dwordx4 v[{Q}:{Q+3}], v15, s[24:27], s42 offen offset:{p*1024} sc1")
        lds=[]
        for i,sr in enumerate(oth):
            x(f"s_add_u32 s{50+i}, s46, {sr*16384}")
            L=[f"buffer_load_dwordx4 v[{96+16*i+4*p}:{99+16*i+4*p}], v15, s[24:27], s{50+i} offen offset:{p*1024} sc1" for p in range(4)]
            for l in L: x(l, tag=('R',i))
            lds.append(L)
        for i in range(3):
            R=96+16*i; uid[0]+=1; u=uid[0]
            x.wait_vm_tag(('R',i))
            chk=f"v_xor_b32 v16, v51, v{R+3}\n v_xor_b32 v17, v51, v{R+7}\n v_xor_b32 v18, v51, v{R+11}\n v_xor_b32 v19, v51, v{R+15}\n v_or3_b32 v16, v16, v17, v18\n v_or_b32 v16, v16, v19\n v_cmp_eq_u32 vcc, 0, v16\n"
            x(chk)
            x(f"s_cmp_eq_u64 vcc, -1\ns_cbranch_scc1 XOK{u}")
            x.raw(f"s_mov_b32 s53, 0\nXSP{u}:\n s_sleep {opt.get('xs',1)}\n "+"\n ".join(lds[i])+f"\n s_add_u32 s53, s53, 1\n s_waitcnt vmcnt(0)\n {chk} s_cmp_ge_u32 s53, 0x40000\n s_cbranch_scc1 XOK{u}\n s_nop 1\n s_cmp_eq_u64 vcc, -1\n s_cbranch_scc0 XSP{u}\nXOK{u}:")
            for k in range(12):
                P=R+4*(k//3)+k%3; a=AC+24*ks+2*k; t=16+2*(k%4)
                x(f"v_lshlrev_b32 v{t}, 16, v{P}\nv_and_b32 v{t+1}, 0xffff0000, v{P}\nv_add_f32 v{a}, v{a}, v{t}\nv_add_f32 v{a+1}, v{a+1}, v{t+1}")
                if i==2 and k%4==3:
                    uu=k//4; a=AC+24*ks+8*uu; Q=32+4*uu
                    for p in range(4): x(f"v_cvt_pk_bf16_f32 v{Q+p}, v{a+2*p}, v{a+2*p+1}")
                    x(f"v_permlane16_swap_b32 v{Q}, v{Q+2}\nv_permlane16_swap_b32 v{Q+1}, v{Q+3}")
                    x(f"buffer_store_dwordx4 v[{Q}:{Q+3}], v7, s[20:23], s48 offen offset:{uu*64}")
        ts.end(x,13); x("s_endpgm")
        txt.append(x.text())
    e.raw('\n'.join(txt))
def g2_loader(e,opt,run_g1,epi5,lateflags):
    ts=opt['TS']
    def setup(e):
        g2_ids(e)
        e("s_sub_u32 s32, s28, 4")
        e("v_lshrrev_b32 v5, 2, v1\nv_and_b32 v0, 3, v1\nv_lshlrev_b32 v0, 4, v0\nv_mul_u32_u24 v4, 1152, v5\nv_add_u32 v4, v4, v0\nv_and_b32 v0, 1, v1\nv_lshlrev_b32 v0, 10, v0\nv_lshl_add_u32 v7, v5, 12, v0\nv_bfe_u32 v0, v1, 1, 1\nv_lshl_add_u32 v7, v0, 4, v7")
        e("v_lshrrev_b32 v5, 3, v1\nv_mul_u32_u24 v4, 1152, v5\nv_bfe_u32 v5, v1, 4, 1\nv_lshlrev_b32 v5, 2, v5\nv_and_b32 v0, 7, v1\nv_xor_b32 v0, v0, v5")
        if opt.get('m16',1): e("v_lshrrev_b32 v5, 5, v1\nv_lshlrev_b32 v5, 1, v5\nv_xor_b32 v0, v0, v5")
        e("v_lshl_add_u32 v4, v0, 4, v4")
        e("v_min_u32 v0, 5, v1\nv_lshlrev_b32 v0, 3, v0\nv_min_u32 v5, 36, v1\nv_lshlrev_b32 v5, 3, v5")
        e("s_lshl_b32 s33, s29, 2\ns_add_u32 s33, s33, s32")
        e(f"s_lshl_b32 s39, s33, 2\ns_add_u32 s39, s39, s55\ns_lshl_b32 s39, s39, 9\ns_add_u32 s39, s39, {HF}")
        e(f"s_and_b32 s40, s33, 31\ns_lshl_b32 s40, s40, 5\ns_lshr_b32 s42, s33, 5\ns_lshl_b32 s42, s42, 11\ns_add_u32 s40, s40, s42\ns_mul_i32 s42, s55, {144*4096}\ns_add_u32 s40, s40, s42\ns_add_u32 s40, s40, {ZT_OFF}")
        e("s_mul_i32 s33, s33, 294912\ns_mul_i32 s42, s55, 73728\ns_add_u32 s33, s33, s42")
        e(f"s_lshl_b32 s34, s32, 12\ns_add_u32 s34, s34, {6*TSZ}\ns_lshl_b32 s36, s32, 11")
        e(f"s_lshr_b32 s42, s32, 1\ns_mul_i32 s35, s42, {192*1152}\ns_and_b32 s42, s32, 1\ns_mul_i32 s42, s42, {16*1152}\ns_add_u32 s35, s35, s42\ns_mul_i32 s42, s55, {1152*1152}\ns_add_u32 s35, s35, s42\ns_mul_i32 s43, s30, 384\ns_add_u32 s35, s35, s43")
        e(f"s_mul_i32 s44, s55, {144*1152}\ns_add_u32 s44, s44, s43\ns_mul_i32 s42, s32, {16*1152}\ns_add_u32 s43, s44, s42")
        e(f"s_mov_b32 s47, {ZF}")
    def wpart(c):
        so=(c%4)*SL; L=[]
        if c<18: sb,lit,R="s35",(384*(c%3)+32*(c//3))*1152,12
        else: sb,lit,R="s43",64*(c-18)*1152,16
        if c<20:
            for t in range(6):
                def f(e,t=t):
                    pp,z=t%3,t//3
                    if pp==0: e(f"s_add_u32 s37, {sb}, {lit+z*9216}")
                    e(f"s_add_u32 m0, s36, {(so+pp*8192+z*1024-pp*128)&0xffffffff}")
                    e(f"buffer_load_dwordx4 v4, s[{R}:{R+3}], s37 offen offset:{pp*128} lds", tag=c)
                L.append(f)
        else:
            def f(e):
                for z in range(2):
                    if z==0: e("s_mov_b32 s42, s32")
                    else: e("s_add_u32 s42, s32, 4\ns_min_u32 s42, s42, 5")
                    e(f"s_and_b32 s38, s42, 1\ns_lshr_b32 s42, s42, 1\ns_mul_i32 s37, s38, 9216\ns_add_u32 s37, s37, s44\ns_add_u32 s37, s37, {128*1152}\ns_lshl_b32 s38, s38, 10\ns_lshl_b32 s48, s42, 7\ns_add_u32 s37, s37, s48\ns_lshl_b32 s42, s42, 13\ns_add_u32 s42, s42, s38\ns_add_u32 m0, s42, {so}")
                    e("buffer_load_dwordx4 v4, s[16:19], s37 offen lds", tag=c)
            L.append(f)
        return L
    hld=opt.get('hld','')
    def hpart(c,e):
        so=(c%4)*SL
        if c<18:
            e(f"s_add_u32 s38, s33, {c*4096}\ns_add_u32 m0, s34, {so}")
            for kk in range(4): e(f"buffer_load_dwordx4 v15, s[24:27], s38 offen offset:{kk*1024} {hld} lds", tag=c)
        else:
            for kk in range(4 if c<20 else 1):
                e(f"s_add_u32 s38, s40, {(64*(c-18)+16*kk)*4096}\ns_add_u32 m0, s34, {so+kk*1024}")
                e(f"buffer_load_dwordx4 v7, s[24:27], s38 offen {hld} lds", tag=c)
    fl={180:[setup]}
    W=[f for c in range(2) for f in wpart(c)]
    for i,f in enumerate(W): fl.setdefault(181+i,[]).append(f)
    fl.setdefault(opt.get('p0i',190),[]).append(lambda e: poll_issue(e,10,0,"s39",0))
    PCK=opt.get('p0c',200)
    fl.setdefault(PCK,[]).append(lambda e: check_spin(e,10,0,"s39",0,issue=False))
    for c in range(2): fl.setdefault(min(PCK+2*c,215),[]).append(lambda e,c=c: hpart(c,e))
    fl.setdefault(215,[]).append(lambda e: poll_issue(e,10,0,"s39",48))
    if opt.get('sp',144)==180: fl[180].insert(0,"s_setprio 1")
    run_g1(fl); ts(e,7)
    if not opt.get('de',1): epi5()
    late=dict(lateflags)
    for c in range(NCH):
        e.wait_vm_tag(c); e("s_barrier")
        LT=[int(v) for v in str(opt.get('lts','0,6,12,18')).split(',')]
        if c in LT: ts(e,8+LT.index(c))
        n=c+2
        if n<NCH:
            if n<18 and n%3==0: check_spin(e,10,0,"s39",(n//3)*48,issue=False)
            if n==18: check_spin(e,10,5,"s47",0,issue=False)
            if 2<n<15 and n%3==2: poll_issue(e,10,0,"s39",(n//3+1)*48)
            if n==17: poll_issue(e,10,5,"s47",0)
            for f in wpart(n): f(e)
            hpart(n,e)
        DC,DN=opt.get('dc',0),opt.get('dn',2)
        if DC<=c<DC+DN and opt.get('de',1):
            if opt.get('sp',144) and c==DC: e("s_setprio 0")
            for o in epi5[(c-DC)*len(epi5)//DN:(c-DC+1)*len(epi5)//DN]:
                if callable(o): o(e)
                else: e(o)
        LC=[int(v) for v in str(opt.get('lc','2,4,7')).split(',')][-len(lateflags):]
        assert LC[-1]>=DC+DN-1 and (len(epi5)<100 or LC[-2]>=DC+DN//2-1+DN%2)
        if c in LC:
            t=min(late); late.pop(t)(e)
    assert not late
    ts.end(e,12); e("s_endpgm")

def fft(e, opt):
    ts=opt['TS']
    C32=0;S32=2048;N32=4096;C64=6144;S64=14336;N64=22528;T1=30720;T2=47104; WL=65536
    e("s_load_dwordx4 s[44:47], s[0:1], 8")
    pcptr(e,12,"FFTTAB","")
    e(f"s_mov_b32 s14, {64*1024}\ns_mov_b32 s15, 0x20000")
    e("v_and_b32 v1, 63, v0\nv_lshlrev_b32 v9, 4, v1\ns_lshl_b32 s42, s28, 13\nv_add_u32 v7, s42, v9\nv_mov_b32 v0, 0")
    e("s_lshl_b32 m0, s28, 13")
    for i in range(4): e(f"buffer_load_dwordx4 v7, s[12:15], 0 offen offset:{i*1024} lds", tag='T')
    e("s_movk_i32 s42, 0x1000\ns_add_u32 m0, m0, s42")
    for i in range(4): e(f"buffer_load_dwordx4 v7, s[12:15], s42 offen offset:{i*1024} lds", tag='T')
    nonce_issue(e,0)
    PA=96; PB=64; WR=32; A1=128; A2=192; GL=131072
    def pk(base,T,ri,t): r=base+16*T+8*ri+4*t; return f"v[{r}:{r+3}]"
    def ac(base,T,ri): r=base+32*T+16*ri; return f"v[{r}:{r+15}]"
    srd(e,16,44,2048*578); srd(e,20,46,2048*578)
    e("s_lshl_b32 s30, s29, 3\ns_add_u32 s30, s30, s28\nv_and_b32 v5, 31, v1\nv_lshrrev_b32 v6, 5, v1")
    e("s_cmp_ge_u32 s29, 32\ns_cbranch_scc1 F_NOPROD")
    e2=e.fork()
    if opt.get('wp',72):
        nonce_check(e,0)
        e(f"s_lshl_b32 s47, s3, 8\ns_add_u32 s47, s47, {SF}\ns_cmp_lg_u32 s28, 0\ns_cbranch_scc1 F_NOSP")
        check_spin(e,10,0,"s47",0,sl=16)
        e.label("F_NOSP"); e("s_barrier")
    e("s_lshr_b32 s31, s29, 3\ns_lshl_b32 s31, s31, 9\ns_bfe_u32 s42, s29, 0x10002\ns_lshl_b32 s42, s42, 7\ns_add_u32 s31, s31, s42\ns_and_b32 s42, s29, 3\ns_lshl_b32 s42, s42, 3\ns_add_u32 s31, s31, s42")
    e("s_and_b32 s42, s28, 3\ns_lshl_b32 s42, s42, 5\ns_add_u32 s31, s31, s42\ns_lshr_b32 s42, s28, 2\ns_lshl_b32 s42, s42, 8\ns_add_u32 s31, s31, s42\ns_mul_i32 s31, s31, 578")
    e(f"v_add_u32 v7, s31, v9\ns_mul_i32 s32, s28, 5120\ns_add_u32 s32, s32, {WL}\ns_movk_i32 s42, 0x1000")
    for ri in range(2):
        e(f"s_add_u32 m0, s32, {ri*40960}")
        for b in range(4): e(f"buffer_load_dwordx4 v7, s[{16+4*ri}:{19+4*ri}], 0 offen offset:{b*1024} lds", tag='T')
        e(f"s_add_u32 m0, s32, {ri*40960+4096}")
        e(f"v_add_u32 v8, s42, v7\nbuffer_load_dwordx4 v8, s[{16+4*ri}:{19+4*ri}], 0 offen lds", tag='T')
    nonce_check(e,0)
    e(f"v_and_b32 v10, 7, v1\nv_lshrrev_b32 v11, 3, v1\ns_lshl_b32 s42, s28, 3\nv_add_u32 v11, s42, v11\nv_mul_u32_u24 v7, 578, v10\nv_lshl_add_u32 v7, v11, 1, v7\nv_add_u32 v7, {WL}, v7\nv_add_u32 v13, 40960, v7")
    e(f"v_lshlrev_b32 v8, 13, v11\nv_lshl_add_u32 v8, v10, 4, v8\nv_cmp_gt_u32 vcc, 33, v11\nv_mov_b32 v12, {hex(OOB)}\nv_cndmask_b32 v12, v12, v8, vcc")
    e(f"s_lshr_b32 s33, s29, 3\ns_lshl_b32 s33, s33, 10\ns_and_b32 s42, s29, 7\ns_lshl_b32 s42, s42, 7\ns_add_u32 s33, s33, s42\ns_add_u32 s33, s33, {WT_OFF}")
    e.wait_vm_tag('T'); e.wait_all(vm=False); e("s_barrier")
    def wrd(i):
        ri,it=i//5,i%5
        for g in range(8): e(f"ds_read_u16{'_d16_hi' if g&1 else ''} v{A1+8*i+g}, v{13 if ri else 7} offset:{g*5120+it*128}")
    wrd(0); wrd(1)
    for i in range(10):
        ri,it=i//5,i%5
        if i+2<10: wrd(i+2)
        for p in range(4): e(f"v_or_b32 v{WR+4*i+p}, v{A1+8*i+2*p}, v{A1+8*i+2*p+1}")
        e(f"s_add_u32 s42, s33, {ri*4096+it*64*8192}\nbuffer_store_dwordx4 v[{WR+4*i}:{WR+4*i+3}], v{12 if it==4 else 8}, s[24:27], s42 offen sc1")
    e(f"v_cmp_eq_u32 vcc, 0, v1\nv_mov_b32 v10, {hex(OOB)}\nv_cndmask_b32 v10, v10, v1, vcc\ns_lshl_b32 s41, s29, 3\ns_add_u32 s41, s41, {XF}")
    e("s_waitcnt vmcnt(0)\ns_barrier\ns_cmp_lg_u32 s28, 0\ns_cbranch_scc1 F_PJOIN")
    e(f"buffer_store_dwordx2 v[{NV}:{NV+1}], v10, s[24:27], s41 offen sc1\ns_branch F_PJOIN")
    e2.label("F_NOPROD"); nonce_check(e2,0); e2.wait_all()
    e.raw(e2.text()); e.label("F_PJOIN"); e.raw("s_nop 4")
    e("v_lshrrev_b32 v8, 3, v1\nv_lshrrev_b32 v10, 1, v8\ns_and_b32 s42, s28, 1\ns_lshl_b32 s42, s42, 2\nv_add_u32 v10, s42, v10\nv_and_b32 v11, 7, v1\nv_xor_b32 v10, v10, v11\nv_lshlrev_b32 v10, 4, v10")
    e("v_lshl_add_u32 v12, v8, 7, v10\nv_mul_u32_u24 v8, 36864, v8\nv_add_u32 v8, v8, v10")
    e(f"s_lshr_b32 s42, s29, 2\ns_lshl_b32 s42, s42, 11\ns_and_b32 s35, s29, 3\ns_lshl_b32 s35, s35, 7\ns_add_u32 s35, s35, s42\ns_mul_i32 s42, s28, {8*36864}\ns_add_u32 s35, s35, s42\ns_add_u32 s35, s35, {U_OFF}\ns_add_u32 s36, s35, {9*2048}")
    e(f"s_lshl_b32 s32, s28, 10\ns_add_u32 s39, s32, {G_OFF}")
    e(f"v_bfe_u32 v15, v1, 1, 3\nv_xor_b32 v13, s28, v15\nv_lshlrev_b32 v13, 4, v13\nv_lshl_add_u32 v13, v5, 7, v13\nv_lshl_add_u32 v13, v6, 13, v13\nv_add_u32 v13, {WL}, v13")
    e(f"v_lshlrev_b32 v4, 2, v6\nv_xor_b32 v4, v4, v15\nv_lshlrev_b32 v4, 4, v4\nv_lshl_add_u32 v4, v5, 7, v4\nv_add_u32 v4, {GL}, v4")
    e(f"s_lshl_b32 s31, s30, 12\ns_add_u32 s33, s31, {288*4096}\ns_cmp_eq_u32 s30, 0\ns_cselect_b32 s33, {hex(OOB)}, s33\ns_cmp_eq_u32 s30, 288\ns_cselect_b32 s33, {hex(OOB)}, s33")
    e(f"s_add_u32 s37, s31, {ZT_OFF}\ns_mov_b32 s38, {ZT_OFF}")
    e("v_lshlrev_b32 v5, 5, v5\nv_lshl_add_u32 v5, v6, 4, v5\nv_add_u32 v6, s33, v5\nv_mov_b32 v0, v9")
    if opt.get('pwv',1):
        e(f"s_lshr_b32 s42, s29, 2\ns_cmp_ge_u32 s42, 6\ns_cselect_b32 s43, 2048, 0\ns_cmp_ge_u32 s42, 3\ns_cselect_b32 s42, 2, 1\ns_lshl_b32 s42, s42, 11\ns_sub_u32 s42, s42, s43\nv_min_u32 v7, 1, v1\nv_mul_u32_u24 v7, s42, v7\ns_lshl_b32 s47, s28, 8\ns_add_u32 s47, s47, s43\ns_add_u32 s47, s47, {UF2}")
        e.wait_all(); e("s_barrier")
        check_spin(e,10,7,"s47",0,sl=opt.get('usl',4))
        ts(e,1)
    else:
        e(f"v_min_u32 v7, 23, v1\nv_lshlrev_b32 v7, 8, v7\ns_mov_b32 s47, {UF2}")
        e.wait_all()
        e("s_cmp_lg_u32 s28, 0\ns_cbranch_scc1 F_NOPOLL")
        check_spin(e,10,7,"s47",0)
        e.label("F_NOPOLL")
        ts(e,1); e("s_barrier")
    for ri in range(2):
        for hf in range(2):
            for h in range(2):
                im=hf*1024+h*512
                e(f"s_add_u32 m0, s32, {WL+((ri*2+hf)*2+h)*8192-im}")
                e(f"buffer_load_dwordx4 v8, s[24:27], s{35+ri} offen offset:{im} sc1 lds", tag='U')
    e(f"s_add_u32 m0, s32, {GL}\nbuffer_load_dwordx4 v12, s[24:27], s39 offen sc1 lds", tag='U')
    e(f"v_min_u32 v14, 31, v1\nv_lshlrev_b32 v14, 3, v14\ns_mov_b32 s47, {XF}")
    check_spin(e,10,14,"s47",0,sl=opt.get('wsl',8))
    e(f"s_min_u32 s42, s30, 288\ns_lshl_b32 s42, s42, 13\ns_add_u32 s42, s42, {WT_OFF}\ns_add_u32 s43, s42, 4096")
    for ri in range(2):
        for mt in range(2):
            for q in range(2):
                r=WR+16*mt+8*ri+4*q; e(f"buffer_load_dwordx4 v[{r}:{r+3}], v0, s[24:27], s{42+ri} offen offset:{mt*2048+q*1024} sc1")
    e.wait_vm_tag('U'); e.wait_all(vm=False); e("s_barrier")
    e("s_cmp_gt_u32 s30, 288\ns_cbranch_scc1 M_END")
    if opt.get('fp',1): e.raw(f"s_cmp_ge_u32 s28, 4\n s_cbranch_scc1 F_LOP\n s_setprio {opt.get('fp',1)}\nF_LOP:")
    for T in range(2):
        for t in range(2):
            for ri in range(2): e(f"ds_read_b128 {pk(PB,T,ri,t)}, v13 offset:{ri*32768+t*16384+T*4096}")
    e(f"s_cmp_lg_u32 s33, {hex(OOB)}\ns_cbranch_scc1 F_NOZ")
    e.raw("s_waitcnt lgkmcnt(0)")
    for T in range(2):
        for r in range(8): e.raw(f" v_mov_b32 v{PB+16*T+8+r}, 0")
    e.raw("s_nop 1"); e.label("F_NOZ")
    def cr(i): return f"v[{8+4*i}:{11+4*i}]"
    def mf(D,A,B,first): e(f"v_mfma_f32_32x32x16_bf16 {D}, {A}, {B}, {'0' if first else D}")
    def ld32():
        for i,o in enumerate([C32,C32+1024,S32,S32+1024,N32,N32+1024]): e(f"ds_read_b128 {cr(i)}, v0 offset:{o}")
    def twid(src,dst,tmp,tab):
        def rd(i): e(f"ds_read_b128 {cr(i%6)}, v0 offset:{tab+i*1024}")
        for i in range(5): rd(i)
        for i in range(16):
            T,rp=i//8,i%8
            if i+5<16: rd(i+5)
            w=8+4*(i%6); ar=src+32*T+2*rp; ai=ar+16; tt=tmp+4*(i%2)
            for u in range(2):
                e(f"v_mul_f32 v{tt+u}, v{ar+u}, v{w+2*u}\nv_mul_f32 v{tt+2+u}, v{ai+u}, v{w+2*u}")
            for u in range(2):
                e(f"v_fma_f32 v{tt+u}, -v{ai+u}, v{w+2*u+1}, v{tt+u}\nv_fma_f32 v{tt+2+u}, v{ar+u}, v{w+2*u+1}, v{tt+2+u}")
            e(f"v_cvt_pk_bf16_f32 v{dst+16*T+rp}, v{tt}, v{tt+1}\nv_cvt_pk_bf16_f32 v{dst+16*T+8+rp}, v{tt+2}, v{tt+3}")
    ld32()
    for T in range(2):
        for t in range(2):
            mf(ac(A1,T,0),pk(PB,T,0,t),cr(t),t==0); mf(ac(A1,T,1),pk(PB,T,1,t),cr(t),t==0)
            mf(ac(A1,T,0),pk(PB,T,1,t),cr(2+t),False); mf(ac(A1,T,1),pk(PB,T,0,t),cr(4+t),False)
    ts(e,2); twid(A1,PA,A2,T1); ts(e,3)
    def big(kind):
        seq=[(o,ks) for o in range(2) for ks in range(4)]
        def rd(i):
            o,ks=seq[i]
            for z,b in enumerate((C64,S64,N64)): e(f"ds_read_b128 {cr(3*(i%2)+z)}, v0 offset:{b+(4*o+ks)*1024}")
        rd(0)
        for i,(o,ks) in enumerate(seq):
            c,s_,n=[cr(3*(i%2)+z) for z in range(3)]
            if kind==2:
                dr,di=pk(PA,ks//2,0,ks%2),pk(PA,ks//2,1,ks%2)
                mf(ac(A2,o,0),c,dr,ks==0)
                if i+1<8: rd(i+1)
                mf(ac(A2,o,1),c,di,ks==0); mf(ac(A2,o,0),s_,di,False); mf(ac(A2,o,1),n,dr,False)
            else:
                dr,di=pk(PB,ks//2,0,ks%2),pk(PB,ks//2,1,ks%2)
                mf(ac(A1,o,0),dr,c,ks==0)
                if i+1<8: rd(i+1)
                mf(ac(A1,o,1),di,c,ks==0); mf(ac(A1,o,0),di,n,False); mf(ac(A1,o,1),dr,s_,False)
    big(2); ts(e,4)
    for i in range(16):
        mt,rp=i//8,i%8
        ar=A2+32*mt+2*rp; ai=ar+16; wr=WR+16*mt+rp; wi=wr+8; tt=A1+8*(i%2)
        e(f"v_lshlrev_b32 v{tt+4}, 16, v{wr}\nv_and_b32 v{tt+5}, 0xffff0000, v{wr}\nv_lshlrev_b32 v{tt+6}, 16, v{wi}\nv_and_b32 v{tt+7}, 0xffff0000, v{wi}")
        for u in range(2): e(f"v_mul_f32 v{tt+u}, v{ar+u}, v{tt+4+u}\nv_mul_f32 v{tt+2+u}, v{ai+u}, v{tt+4+u}")
        for u in range(2): e(f"v_fma_f32 v{tt+u}, -v{ai+u}, v{tt+6+u}, v{tt+u}\nv_fma_f32 v{tt+2+u}, v{ar+u}, v{tt+6+u}, v{tt+2+u}")
        e(f"v_cvt_pk_bf16_f32 v{PB+16*mt+rp}, v{tt}, v{tt+1}\nv_cvt_pk_bf16_f32 v{PB+16*mt+8+rp}, v{tt+2}, v{tt+3}")
    GR=WR
    for q in range(4):
        if q: e(f"v_xor_b32 v7, {16*q}, v4")
        for T in range(2): e(f"ds_read_b128 v[{GR+16*T+4*q}:{GR+16*T+4*q+3}], v{7 if q else 4} offset:{T*4096}")
    ts(e,5); big(3); ts(e,6)
    twid(A1,PA,A2,T2); ts(e,7)
    ld32()
    for T in range(2):
        for t in range(2):
            mf(ac(A2,T,0),cr(t),pk(PA,T,0,t),t==0); mf(ac(A2,T,1),cr(t),pk(PA,T,1,t),t==0)
            mf(ac(A2,T,0),cr(4+t),pk(PA,T,1,t),False); mf(ac(A2,T,1),cr(2+t),pk(PA,T,0,t),False)
    for T in range(2):
        for ri in range(2):
            for q in range(2):
                a=A2+32*T+16*ri+8*q; P=PB+16*T+8*ri+4*q; g=GR+16*T+8*q
                for p in range(8): e(f"v_mul_f32 v{a+p}, v{a+p}, v{g+p}")
                for p in range(4): e(f"v_cvt_pk_bf16_f32 v{P+p}, v{a+2*p}, v{a+2*p+1}")
                if ri==0: e(f"buffer_store_dwordx4 v[{P}:{P+3}], v5, s[24:27], s37 offen offset:{T*2048+q*1024} sc1")
                else:     e(f"buffer_store_dwordx4 v[{P}:{P+3}], v6, s[24:27], s38 offen offset:{T*2048+q*1024} sc1")
    ts(e,8)
    e(f"v_cmp_eq_u32 vcc, 0, v1\nv_mov_b32 v9, {hex(OOB)}\nv_cndmask_b32 v8, v9, v1, vcc\ns_lshl_b32 s41, s29, 3\ns_add_u32 s41, s41, {ZF}")
    e("s_waitcnt vmcnt(0)\ns_barrier\ns_cmp_lg_u32 s28, 0\ns_cbranch_scc1 F_NOFLAG")
    e(f"buffer_store_dwordx2 v[{NV}:{NV+1}], v8, s[24:27], s41 offen sc1")
    e.label("F_NOFLAG")
    ts.end(e,9); e("s_endpgm")

def helper(e,opt):
    e("s_sub_u32 s30, s54, 27\ns_lshl_b32 s30, s30, 3\ns_add_u32 s30, s30, s28\nv_and_b32 v1, 63, v0")
    pcptr(e,16,"FTAB",""); e(f"s_mov_b32 s18, {576*1152}\ns_mov_b32 s19, 0x20000")
    e("s_lshl_b32 s31, s30, 6\nv_add_u32 v4, s31, v1\nv_lshlrev_b32 v5, 7, v4")
    e(f"s_mov_b32 s35, {opt.get('hc0',1)*64*1152}\nbuffer_load_dword v16, v5, s[16:19], s35 offen")
    e(f"v_add_u32 v5, {2560*128+opt.get('hc0',1)*64*1152}, v5\nbuffer_load_dword v17, v5, s[16:19], 0 offen")
def helper2(e,opt):
    srd(e,16,96,4608*1152)
    e(f"s_mul_i32 s35, s33, {1152*1152}")
    for z in range(5):
        e(f"v_add_u32 v5, {z*2560}, v4\nv_min_u32 v5, 10367, v5\nv_lshlrev_b32 v5, 7, v5\nbuffer_load_dword v{48+z}, v5, s[16:19], s35 offen")
    pcptr(e,16,"GTR",""); e(f"s_mov_b32 s18, {576*1152}\ns_mul_i32 s35, s33, {144*1152}")
    e("v_min_u32 v5, 1295, v4\nv_lshlrev_b32 v5, 7, v5\nbuffer_load_dword v56, v5, s[16:19], s35 offen")

def helper3(e,opt):
    e("s_sub_u32 s52, s54, 27\ns_lshl_b32 s52, s52, 3\ns_add_u32 s52, s52, s28\ns_lshl_b32 s52, s52, 6\nv_and_b32 v20, 63, v1\nv_add_u32 v20, s52, v20")
    d=64
    if opt.get('h3',0)&2==0:
        srd(e,48,6,576*9216)
        e("s_lshr_b32 s52, s3, 1\ns_mul_i32 s52, s52, 2304\ns_add_u32 s52, s52, 256")
        for z in range(2):
            e(f"v_add_u32 v21, {z*2560}, v20\nv_mul_u32_u24 v22, 43691, v21\nv_lshrrev_b32 v22, 18, v22\nv_mul_u32_u24 v23, 6, v22\nv_sub_u32 v23, v21, v23\nv_mul_u32_u24 v23, 384, v23\nv_mul_u32_u24 v22, 9216, v22\nv_add_u32 v22, v22, v23")
            e(f"buffer_load_dword v{d}, v22, s[48:51], s52 offen"); d+=1
    srd(e,48,96,4608*1152)
    e(f"s_lshr_b32 s52, s3, 1\ns_mul_i32 s52, s52, {1152*1152}")
    for z in range(5):
        e(f"v_add_u32 v21, {z*2560}, v20\nv_lshlrev_b32 v22, 7, v21")
        if z==4: e(f"v_cmp_gt_u32 vcc, 10368, v21\nv_mov_b32 v23, {hex(OOB)}\nv_cndmask_b32 v22, v23, v22, vcc")
        e(f"buffer_load_dword v{d}, v22, s[48:51], s52 offen"); d+=1
    pcptr(e,48,"GTR",""); e(f"s_mov_b32 s50, {576*1152}\ns_lshr_b32 s52, s3, 1\ns_mul_i32 s52, s52, {144*1152}")
    e(f"v_cmp_gt_u32 vcc, 1296, v20\nv_lshlrev_b32 v22, 7, v20\nv_cndmask_b32 v22, v23, v22, vcc\nbuffer_load_dword v{d}, v22, s[48:51], s52 offen")

def mega(name,opt):
    e=Em()
    e.raw(f".globl {name}\n.p2align 8\n.type {name},@function\n{name}:")
    e("s_cmp_ge_u32 s2, 256\ns_cbranch_scc1 M_END")
    ts=TS(opt.get('ts',0),0); opt['TS']=ts; ts.start(e)
    e("s_load_dwordx2 s[4:5], s[0:1], 0\ns_load_dwordx2 s[6:7], s[0:1], 32\ns_load_dwordx2 s[8:9], s[0:1], 72\ns_load_dwordx2 s[10:11], s[0:1], 48\ns_load_dwordx2 s[96:97], s[0:1], 40\ns_load_dwordx2 s[98:99], s[0:1], 56\ns_load_dwordx2 s[100:101], s[0:1], 64\ns_memrealtime s[56:57]")
    e("v_lshrrev_b32 v1, 6, v0\nv_readfirstlane_b32 s28, v1")
    e("s_and_b32 s3, s2, 7\ns_lshr_b32 s54, s2, 3")
    e("s_waitcnt lgkmcnt(0)")
    e("s_or_b32 s41, s2, s28\ns_cmp_lg_u32 s41, 0\ns_cbranch_scc1 M_NONONCE")
    e.raw("s_or_b32 s56, s56, 1\n v_mov_b32 v2, s56\n v_mov_b32 v3, s57\n v_mov_b32 v4, 0\n global_store_dwordx2 v4, v[2:3], s[100:101] sc1\n s_nop 1\nM_NONONCE:")
    srd(e,24,8,WS_SZ,opt.get('wso',0)<<20)
    e("s_cmp_ge_u32 s54, 27\ns_cbranch_scc1 M_FFT")
    ef=e.fork()
    srd(e,16,4,2048*1152); srd(e,12,10,1152)
    e("s_cmp_ge_u32 s54, 24\ns_cbranch_scc1 M_U")
    eu=e.fork()
    srd(e,20,6,576*9216)
    e("s_and_b32 s29, s3, 1\ns_lshl_b32 s29, s29, 2\ns_and_b32 s42, s54, 3\ns_add_u32 s29, s29, s42")
    e("s_lshr_b32 s30, s3, 1\ns_mul_i32 s30, s30, 6\ns_lshr_b32 s42, s54, 2\ns_add_u32 s30, s30, s42")
    L=g1(e,'h',opt)
    eu.label("M_U")
    pcptr(eu,20,"FTAB","")
    eu(f"s_mov_b32 s22, {576*1152}\ns_mov_b32 s23, 0x20000\ns_sub_u32 s30, s54, 24")
    eu("s_and_b32 s29, s3, 1\ns_lshl_b32 s29, s29, 2\ns_lshr_b32 s42, s3, 1\ns_add_u32 s29, s29, s42")
    L+=g1(eu,'u',opt)
    ef.label("M_FFT")
    ef("s_mul_i32 s29, s3, 5\ns_add_u32 s29, s29, s54\ns_sub_u32 s29, s29, 27")
    if opt.get('hp',1):
        helper(ef,opt)
        if opt.get('h2',0)==1: helper2(ef,opt)
    ef("s_cmp_ge_u32 s29, 37\ns_cbranch_scc1 M_IDLE")
    ei=ef.fork()
    fft(ef,opt)
    ei.label("M_IDLE"); ei("v_and_b32 v1, 63, v0")
    if opt.get('h3',0): helper3(ei,opt)
    ef.raw(ei.text())
    ef.label("M_END"); ef.raw("s_waitcnt vmcnt(0)\ns_endpgm")
    return '\n'.join(x.text() for x in L+[ef])
```

```python
from common import *
LDS=163840
WS_SZ=0x4000000; P2_OFF=0x3200000
FL=0x2800000; HF=FL; UF=FL+0x20000; ZF=FL+0x20400; XF=FL+0x21000; UF2=FL+0x22000; SF=FL+0x24000
OOB=0x7f000000
RAO=73728; XR=98304; PC=90112
XFR=112; ACC=48; FR=32; RA=3; NR=4
LOG2E=1.4426950408889634
NV=2
uid=[0]
def check_spin(e, d, vaddr, soff, imm, issue=True, sl=2):
    uid[0]+=1; u=uid[0]
    ld=f"buffer_load_dwordx2 v[{d}:{d+1}], v{vaddr}, s[24:27], {soff} offen offset:{imm} sc1"
    if issue: e(ld)
    e(f"v_cmp_eq_u64 vcc, v[{d}:{d+1}], v[{NV}:{NV+1}]")
    e(f"s_cmp_eq_u64 vcc, -1\ns_cbranch_scc1 POK{u}")
    e.raw(f"s_mov_b32 s53, 0\nPSP{u}:\n s_sleep {sl}\n {ld}\n s_add_u32 s53, s53, 1\n s_waitcnt vmcnt(0)\n v_cmp_eq_u64 vcc, v[{d}:{d+1}], v[{NV}:{NV+1}]\n s_cmp_ge_u32 s53, 0x40000\n s_cbranch_scc1 POK{u}\n s_nop 1\n s_cmp_eq_u64 vcc, -1\n s_cbranch_scc0 PSP{u}\nPOK{u}:")
def poll_issue(e, d, vaddr, soff, imm, tag=None):
    e(f"buffer_load_dwordx2 v[{d}:{d+1}], v{vaddr}, s[24:27], {soff} offen offset:{imm} sc1", tag=tag)
def nonce_issue(e, vz, NV=NV):
    e(f"global_load_dwordx2 v[{NV}:{NV+1}], v{vz}, s[100:101] sc1")
def nonce_check(e, vz, NV=NV):
    uid[0]+=1; u=uid[0]
    e(f"v_cmp_ne_u64 vcc, 0, v[{NV}:{NV+1}]")
    e(f"s_cmp_eq_u64 vcc, -1\ns_cbranch_scc1 NOK{u}")
    e.raw(f"s_mov_b32 s53, 0\nNSP{u}:\n s_sleep 2\n global_load_dwordx2 v[{NV}:{NV+1}], v{vz}, s[100:101] sc1\n s_add_u32 s53, s53, 1\n s_waitcnt vmcnt(0)\n v_cmp_ne_u64 vcc, 0, v[{NV}:{NV+1}]\n s_cmp_ge_u32 s53, 0x40000\n s_cbranch_scc1 NOK{u}\n s_nop 1\n s_cmp_eq_u64 vcc, -1\n s_cbranch_scc0 NSP{u}\nNOK{u}:")

def g1(e, mode, opt):
    ts=opt['TS']; H=(mode=='h')
    st = 9216 if H else 1152
    e("s_lshl_b32 s31, s29, 3\ns_add_u32 s31, s31, s28")
    e("s_mul_i32 s32, s31, 1152")
    for q in (1,2,3): e(f"s_add_u32 s{32+q}, s32, {q*8*64*1152}")
    e(f"s_lshl_b32 s36, s28, 13\ns_add_u32 s36, s36, {XR}")
    e("s_mul_i32 s43, s30, 384")
    e(f"s_and_b32 s41, s28, 3\ns_mul_i32 s37, s41, {16*st}\ns_lshr_b32 s42, s28, 2\ns_lshl_b32 s44, s42, 7\ns_add_u32 s37, s37, s44\ns_add_u32 s37, s37, s43")
    e(f"s_lshl_b32 s41, s41, 11\ns_cmp_eq_u32 s42, 0\ns_cselect_b32 s38, {RAO+8192}, 0\ns_cselect_b32 s40, 24576, 0\ns_add_u32 s38, s38, s41")
    ROT=opt.get('rot',0)&(1 if H else 2)
    if ROT:
        RM=opt.get('rm',0)
        if not H: e("s_add_u32 s41, s55, s3" if opt.get('ru',0)==0 else "s_mov_b32 s41, s55")
        elif RM==0: e("s_lshr_b32 s41, s54, 2\ns_and_b32 s42, s54, 3\ns_add_u32 s41, s41, s42")
        elif RM==1: e("s_lshr_b32 s41, s54, 2")
        elif RM==2: e("s_and_b32 s41, s54, 3")
        elif RM==3: e("s_lshr_b32 s41, s3, 1\ns_and_b32 s42, s3, 1\ns_add_u32 s41, s41, s42")
        elif RM==4: e("s_lshr_b32 s41, s54, 2\ns_and_b32 s42, s54, 3\ns_add_u32 s41, s41, s42\ns_lshr_b32 s42, s3, 1\ns_add_u32 s41, s41, s42\ns_and_b32 s42, s3, 1\ns_add_u32 s41, s41, s42")
        e("s_mul_i32 s42, s41, 43\ns_lshr_b32 s42, s42, 7\ns_mul_i32 s42, s42, 3\ns_sub_u32 s59, s41, s42")
        e(f"s_mul_i32 s57, s59, 384\ns_mul_i32 s58, s59, {192*st}\ns_add_u32 s37, s37, s58")
        for q in range(4): e(f"s_add_u32 s{32+q}, s{32+q}, s57")
        e(f"s_cmp_eq_u32 s59, 2\ns_cselect_b32 s60, 1152, 0\ns_cselect_b32 s62, {576*st}, 0\ns_cmp_eq_u32 s59, 1\ns_cselect_b32 s61, 1152, 0\ns_cselect_b32 s63, {576*st}, 0")
        e(f"s_sub_u32 s60, s60, 384\ns_sub_u32 s61, s61, 384\ns_sub_u32 s62, s62, {192*st}\ns_sub_u32 s63, s63, {192*st}")
        if H: e("s_mov_b32 s49, s32\ns_add_u32 s50, s43, s58")
    def cm(c): return c%3 if ROT else c
    def wrap(e,c,r,w):
        if ROT and c in (3,6): e(f"s_sub_u32 s{r}, s{r}, s{(62 if w else 60)+c//6}")
    e("v_and_b32 v1, 63, v0")
    e("v_lshrrev_b32 v4, 3, v1\nv_and_b32 v5, 7, v1\nv_lshrrev_b32 v6, 1, v4\nv_xor_b32 v5, v5, v6\nv_lshlrev_b32 v5, 4, v5")
    e("s_mov_b32 s41, 73728\nv_mul_lo_u32 v4, v4, s41\nv_add_u32 v2, v4, v5\nv_xor_b32 v3, 64, v2")
    e(f"v_lshrrev_b32 v5, 3, v1\nv_mul_u32_u24 v4, {st}, v5\nv_bfe_u32 v5, v1, 4, 1\nv_lshlrev_b32 v5, 2, v5\nv_and_b32 v6, 7, v1\nv_xor_b32 v6, v6, v5\nv_lshl_add_u32 v4, v6, 4, v4")
    e(f"v_lshrrev_b32 v5, 2, v1\nv_lshrrev_b32 v6, 4, v1\nv_xor_b32 v5, v5, v6\nv_and_b32 v5, 1, v5\nv_and_b32 v6, 3, v1\nv_lshlrev_b32 v6, 5, v6\nv_lshrrev_b32 v7, 5, v1\nv_lshl_add_u32 v7, v7, 4, v6\nv_lshl_add_u32 v7, v5, 30, v7")
    def group(c):
        def wd(eidx):
            def f(e):
                if eidx==0: wrap(e,c,37,1)
                if eidx==0 and c>0:
                    e("s_add_u32 s38, s38, 8192")
                    if (c+1)%3==0: e("s_sub_u32 s38, s38, s40")
                e(f"s_add_u32 s41, s37, {(64*cm(c)+8*eidx)*st}")
                e(f"s_add_u32 m0, s38, {eidx*1024}")
                e("buffer_load_dwordx4 v4, s[20:23], s41 offen lds", tag=('G',c))
            return f
        def xd(q):
            def f(e):
                e.wait_lg_tag(('x',c-2)); wrap(e,c,32+q,0)
                e(f"s_add_u32 m0, s36, {(c%2)*4096+q*1024-cm(c)*128 & 0xffffffff}")
                e(f"buffer_load_dwordx4 v{2+(q&1)}, s[16:19], s{32+q} offen offset:{cm(c)*128} lds", tag=('G',c))
            return f
        def gd(e):
            wrap(e,c,57,0)
            e(f"buffer_load_dwordx4 v[{16+4*(c%3)}:{19+4*(c%3)}], v7, s[12:15], {'s57' if ROT else 0} offen offset:{128*cm(c)}", tag=('G',c))
        return [wd(0),wd(1)]+[xd(q) for q in range(4)]+[gd]
    if opt.get('PRE'): opt['PRE'](e,H)
    if opt.get('tsd',0): ts(e,2)
    for f in group(0)[2:]+group(0)[:2]: f(e)
    for f in group(1)[2:]+group(1)[:2]: f(e)
    e("v_lshlrev_b32 v15, 4, v1")
    CP=opt.get('cp',4) if H else 0
    def pf(c):
        def f(e):
            wrap(e,c,49,0); wrap(e,c,50,1)
            e(f"buffer_load_dword v{31 if opt.get('n3',0) else 30}, v28, s[16:19], s{49 if ROT else 32} offen offset:{cm(c)*128}")
            e(f"s_add_u32 s41, s{50 if ROT else 43}, {64*cm(c)*9216}\nbuffer_load_dword v31, v29, s[20:23], s41 offen")
        return f
    if CP:
        e(f"s_lshr_b32 s41, s54, 2\ns_mul_i32 s41, s41, 6\nv_add_u32 v28, s41, v1\nv_min_u32 v28, 31, v28\ns_mov_b32 s41, 73728\nv_mul_lo_u32 v28, v28, s41\nv_cmp_gt_u32 vcc, 6, v1\nv_mov_b32 v31, {hex(OOB)}\nv_cndmask_b32 v28, v31, v28, vcc")
        e(f"s_and_b32 s41, s54, 3\ns_lshl_b32 s41, s41, 3\ns_add_u32 s41, s41, s28\ns_lshl_b32 s42, s41, 1\nv_mul_u32_u24 v29, 43, v1\nv_lshrrev_b32 v29, 7, v29\nv_mul_u32_u24 v30, 3, v29\nv_sub_u32 v30, v1, v30\nv_add_u32 v29, s42, v29\nv_mul_u32_u24 v29, 9216, v29\nv_lshl_add_u32 v29, v30, 7, v29\nv_cndmask_b32 v29, v31, v29, vcc")
        e(f"s_lshl_b32 s42, s41, 2\nv_add_u32 v5, s42, v1\nv_mul_u32_u24 v5, 9216, v5\nv_cmp_gt_u32 vcc, 4, v1\nv_cndmask_b32 v5, v31, v5, vcc")
        for c in range(2,CP): pf(c)(e)
    e("v_and_b32 v0, 31, v1\nv_lshrrev_b32 v6, 5, v1\nv_lshrrev_b32 v13, 1, v0\nv_and_b32 v13, 7, v13\nv_xor_b32 v13, v13, v6\nv_lshlrev_b32 v13, 4, v13\nv_lshlrev_b32 v0, 7, v0\nv_add_u32 v0, s36, v0")
    for kk in range(4): e(f"v_xor_b32 v{8+kk}, {32*kk}, v13\nv_add_u32 v{8+kk}, v{8+kk}, v0")
    e("v_lshrrev_b32 v0, 5, v1\nv_lshlrev_b32 v0, 10, v0\nv_bfe_u32 v6, v1, 2, 2\nv_lshl_add_u32 v0, v6, 7, v0\nv_bfe_u32 v6, v1, 3, 1\nv_lshl_add_u32 v0, v6, 6, v0\nv_bfe_u32 v6, v1, 4, 1\nv_lshl_add_u32 v0, v6, 5, v0\nv_and_b32 v6, 3, v1\nv_lshl_add_u32 v14, v6, 3, v0")
    e(f"v_add_u32 v12, {RAO}, v14\nv_xor_b32 v13, 64, v12\nv_mov_b32 v0, 0")
    if H:
        e("s_lshr_b32 s55, s3, 1\ns_lshr_b32 s42, s54, 2\ns_mul_i32 s45, s31, 294912\ns_mul_i32 s41, s55, 73728\ns_add_u32 s45, s45, s41\ns_lshl_b32 s41, s42, 11\ns_add_u32 s45, s45, s41")
        e(f"s_lshl_b32 s52, s31, 2\ns_add_u32 s52, s52, s55\ns_lshl_b32 s52, s52, 9\ns_lshl_b32 s41, s42, 3\ns_add_u32 s52, s52, s41\ns_add_u32 s52, s52, {HF}")
        e(f"s_mov_b32 s46, {hex(f32bits(-LOG2E))}")
    else:
        e(f"s_mul_i32 s45, s30, 12288\ns_mul_i32 s41, s31, 36864\ns_add_u32 s45, s45, s41\ns_add_u32 s45, s45, {U_OFF}")
    e(f"s_mul_i32 s47, s28, {8*st}\ns_add_u32 s47, s47, s43\ns_add_u32 s47, s47, 256\ns_lshl_b32 s48, s28, 10")
    if ROT: e("s_add_u32 s47, s47, s58")
    NC3=opt.get('n3',0) if H else 0; N3=4*NC3
    steps=[(t,4*c+kk) for c in range(9) for kk in range(4) for t in range(4 if c<NC3 else 3)]+[(3,k) for k in range(N3,36)]+[(t,k) for t in (4,5) for k in range(36)]
    def S(c): return 12*c+4*min(c,NC3)
    def F(p):
        if p>=108: return min(p+N3,143) if p<144 else p
        c,q=p//12,p%12; return S(c)+(4 if c<NC3 else 3)*(q//3)+q%3
    slot={0:0,1:1,2:2,3:3,4:0,5:1}
    def frag_read(e,m):
        t,k=steps[m]; r=FR+4*(m%NR)
        tag=None
        if t<2: base,off,tag=12+t,((k//4+1)%3)*8192+(k%4)*2048,('a',k//4)
        else:
            base={2:14,3:30 if k<N3 else 14,4:12,5:13}[t]; off=(k%32)*2048
            if NC3 and t==3 and k==N3: e("v_mov_b32 v14, v30")
            if t==3: tag='b'
            if k==32: e(f"v_add_u32 v{base}, 65536, v{base}")
            if k==0 and t==3: e(f"v_subrev_u32 v{base}, {RAO}, v13")
            if k==0 and t>3: e(f"v_add_u32 v{base}, {PC-RAO}, v{base}")
        e(f"ds_read_b64_tr_b16 v[{r}:{r+1}], v{base} offset:{off}",tag=tag)
        e(f"ds_read_b64_tr_b16 v[{r+2}:{r+3}], v{base} offset:{off+512}",tag=tag)
    def xreads(e,c):
        for kk in range(4):
            r=XFR+4*(4*c+kk); e(f"ds_read_b128 v[{r}:{r+3}], v{8+kk} offset:{(c%2)*4096}", tag=('x',c))
    def tdma(i):
        def f(e):
            wrap(e,i,47,1)
            e(f"s_add_u32 s41, s47, {cm(i)*64*st}\ns_add_u32 m0, s48, {PC+i*8192}")
            e("buffer_load_dwordx4 v4, s[20:23], s41 offen lds", tag='T')
        return f
    def epi(t):
        a=ACC+16*slot[t]; L=[]
        for half in range(2):
            P=16+4*((2*t+half)%2)
            if H:
                for pp in range(2):
                    x=[a+8*half+4*pp+u for u in range(4)]; tt=[24+4*pp+u for u in range(4)]
                    L+=[f"v_mul_f32 v{tt[u]}, s46, v{x[u]}" for u in range(4)]
                    L+=[f"v_exp_f32 v{tt[u]}, v{tt[u]}" for u in range(4)]
                    L+=[f"v_fma_f32 v{tt[u]}, v{tt[u]}, v6, v6" for u in range(4)]
                    L+=[f"v_rcp_f32 v{tt[u]}, v{tt[u]}" for u in range(4)]
                    L+=[f"v_mul_f32 v{tt[u]}, v{x[u]}, v{tt[u]}" for u in range(4)]
                    L+=[f"v_cvt_pk_bf16_f32 v{P+2*pp+u}, v{tt[2*u]}, v{tt[2*u+1]}" for u in range(2)]
                def stf(e,P=P,half=half):
                    if half==0: e(f"s_add_u32 s51, s45, {t*12288}")
                    e(f"buffer_store_dwordx4 v[{P}:{P+3}], v15, s[24:27], s51 offen offset:{half*1024} {opt.get('hsc','sc1').replace('-','').replace('_',' ')}", tag=('H',t))
                L.append(stf)
            else:
                for p in range(4): L.append(f"v_cvt_pk_bf16_f32 v{P+p}, v{a+8*half+2*p}, v{a+8*half+2*p+1}")
                L.append(f"s_add_u32 s51, s45, {t*2048}\nbuffer_store_dwordx4 v[{P}:{P+3}], v15, s[24:27], s51 offen offset:{half*1024} sc1")
        return L
    def flag(t):
        def f(e):
            e.wait_vm_tag(('H',t))
            e(f"buffer_store_dwordx2 v[{NV}:{NV+1}], v8, s[24:27], s52 offen offset:{t*48} sc1")
        return f
    fill={m:[] for m in range(len(steps)+1)}
    for c in range(2,9):
        gp=[int(x) for x in str(opt.get('gp','1122334'))]
        for j,f in enumerate(group(c)): fill[F(max(12*(c-2)-3+gp[j],0))].append(f)
        if CP and 2<=c+CP-2<9: fill[F(max(12*(c-2)-3+gp[6],0))].append(pf(c+CP-2))
    if CP: fill[F(opt.get('cp3',40))].append("s_add_u32 s41, s43, s58\nbuffer_load_dword v5, v5, s[20:23], s41 offen offset:256" if ROT else "buffer_load_dword v5, v5, s[20:23], s43 offen offset:256")
    if H and opt.get('tp',0):
        fill[opt['tp']].append("s_and_b32 s41, s54, 3\ns_lshl_b32 s41, s41, 3\ns_add_u32 s41, s41, s28\ns_mul_i32 s41, s41, 18\nv_min_u32 v5, 17, v1\nv_add_u32 v5, s41, v5\nv_mul_u32_u24 v5, 9216, v5\nbuffer_load_dword v5, v5, s[20:23], s43 offen offset:256")
    for j,p in enumerate(spread(9,98,opt.get('te',116) if not NC3 else opt.get('te3',107))): fill[p+N3].append(tdma(j))
    for c in range(9):
        for kk in range(4):
            xr=XFR+4*(4*c+kk); d=96+4*kk; a=16+4*(c%3)
            if NC3:
                d=240+4*kk if c<8 else 16+4*(kk&1); p=F(12*c+1+2*kk); cin=f'v[{d}:{d+3}]' if 0<c<8 else '0'
                if c==8 and kk>=2: fill[p].append(f"v_add_f32 v6, v6, v{d+kk-2}")
                fill[p].append(f"v_mfma_f32_16x16x32_bf16 v[{d}:{d+3}], v[{a}:{a+3}], v[{xr}:{xr+3}], {cin}")
                if c==7 and kk==3: fill[F(92)].append("v_add_f32 v6, v240, v245\nv_add_f32 v6, v6, v250\nv_add_f32 v6, v6, v255")
                continue
            fill[12*c+2+2*kk].append(f"v_mfma_f32_16x16x32_bf16 v[{d}:{d+3}], v[{a}:{a+3}], v[{xr}:{xr+3}], {f'v[{d}:{d+3}]' if c else '0'}")
    fill[F(opt.get('np',74))].append(lambda e: nonce_issue(e,0))
    if not H and opt.get('wp',72):
        fill[20].append(lambda e: nonce_issue(e,0,28))
        fill[21].append(f"s_or_b32 s41, s28, s55\ns_cmp_eq_u32 s41, 0\ns_cselect_b32 s41, 0, {hex(OOB)}\nv_mov_b32 v31, {hex(OOB)}\nv_mov_b32 v30, s41\nv_cmp_eq_u32 vcc, 0, v1\nv_cndmask_b32 v30, v31, v30, vcc\ns_lshl_b32 s49, s3, 8\ns_add_u32 s49, s49, {SF}")
        fill[opt.get('wp',72)]+=[lambda e: nonce_check(e,0,28),"buffer_store_dwordx2 v[28:29], v30, s[24:27], s49 offen sc1"]
    fill[F(96)].append(f"v_cmp_eq_u32 vcc, 0, v1\nv_mov_b32 v9, {hex(OOB)}\nv_cndmask_b32 v8, v9, v0, vcc")
    zf=["v_add_f32 v5, v96, v101\nv_add_f32 v6, v106, v111\nv_add_f32 v5, v5, v6"]
    if NC3: zf=["v_add_f32 v5, v18, v23\nv_add_f32 v5, v5, v6"]
    if H: zf+=[f"v_mul_f32 v5, {hex(f32bits(LOG2E))}, v5","v_exp_f32 v5, v5","v_add_f32 v5, 1.0, v5",f"v_min_f32 v6, {hex(f32bits(1e38))}, v5"]
    else:
        zf+=[f"v_mul_f32 v5, {hex(f32bits(-LOG2E))}, v5","v_exp_f32 v5, v5","v_add_f32 v5, 1.0, v5","v_rcp_f32 v6, v5",
             "v_bfe_u32 v10, v1, 2, 1\nv_lshlrev_b32 v10, 6, v10\nv_bfe_u32 v11, v1, 3, 2\nv_lshl_add_u32 v10, v11, 4, v10\nv_and_b32 v11, 3, v1\nv_lshl_add_u32 v10, v11, 2, v10\nv_lshrrev_b32 v11, 5, v1\nv_lshl_add_u32 v10, v11, 30, v10",
             f"s_lshl_b32 s41, s31, 7\ns_add_u32 s41, s41, {G_OFF}\nbuffer_store_dword v6, v10, s[24:27], s41 offen sc1"]
    fill[107+N3]+=zf[:1]; fill[107+N3+(0 if NC3 else 1)]+=zf[1:]
    fill[108+N3].append(lambda e: nonce_check(e,0))
    E0=opt.get('e0',109); E1=opt.get('e1',216) if H else 216
    NI=6-opt.get('nd',1) if H else 5
    ops=[o for t in range(NI) for o in epi(t)]
    pos=spread(len(ops),E0,E1)
    nn=len(ops)//NI
    if NC3:
        eb=[108+N3]+[int(v) for v in str(opt.get('eb','143,161,179,197,216')).split(',')]
        pos=[p for t in range(NI) for p in spread(nn,eb[t],eb[t+1])]
    assert pos[nn-1]<144 and pos[2*nn-1]<180 and pos[3*nn]>=145 and (NI<5 or pos[4*nn]>=181)
    for o,p in zip(ops,pos): fill[p].append(o)
    FORK=180
    if H and 0<opt.get('sp',144)<180: fill[opt.get('sp',144)].append(lambda e: e.raw("s_cmp_lt_u32 s28, 4\n s_cbranch_scc1 SPX\n s_setprio 1\nSPX:"))
    late=[]
    if H:
        FD=opt.get('fd',20); n=len(ops)//NI
        for t in range(NI):
            p=pos[(t+1)*n-1]+FD
            if p<216: fill[p].append(flag(t))
            else: late.append(t)
        late+=list(range(NI,6))
        def pfw(e):
            srd(e,12,96,4608*1152)
            pcptr(e,16,"GTR",""); e(f"s_mov_b32 s18, {576*1152}\ns_mov_b32 s19, 0x20000")
            if opt.get('pw2',3)==2:
                e(f"s_lshl_b32 s41, s54, 3\ns_add_u32 s41, s41, s28\ns_mul_i32 s42, s41, 6912\ns_mul_i32 s44, s55, {1152*1152}\ns_add_u32 s42, s42, s44\nv_min_u32 v7, 53, v1\nv_lshlrev_b32 v7, 7, v7")
                e("buffer_load_dword v7, v7, s[12:15], s42 offen")
            if opt.get('pw2',3) in (1,3):
                e(f"s_and_b32 s41, s28, 3\ns_lshl_b32 s42, s54, 2\ns_add_u32 s41, s41, s42\ns_lshr_b32 s42, s41, 4\ns_mul_i32 s42, s42, {192*1152}\ns_and_b32 s41, s41, 15\ns_mul_i32 s41, s41, 2304\ns_add_u32 s42, s42, s41\ns_mul_i32 s56, s55, {1152*1152}\ns_add_u32 s56, s56, s42")
                e(f"s_lshr_b32 s41, s28, 2\ns_mul_i32 s41, s41, 36864\ns_add_u32 s41, s41, s56\nv_min_u32 v7, 17, v1\nv_lshlrev_b32 v7, 7, v7")
                e("buffer_load_dword v7, v7, s[12:15], s41 offen")
        fill[F(opt.get('pwp',75))].append(pfw)
        if opt.get('pw2',3)==3:
            for z,p in enumerate(str(opt.get('pq','135,165')).split(',')):
                fill[F(int(p))].append(f"s_lshr_b32 s41, s28, 2\ns_mul_i32 s41, s41, 36864\ns_add_u32 s41, s41, s56\ns_add_u32 s41, s41, {(z+1)*73728}\nv_min_u32 v7, 17, v1\nv_lshlrev_b32 v7, 7, v7\nbuffer_load_dword v7, v7, s[12:15], s41 offen")
    def run(e, lo, hi, fl):
        for m in range(lo,hi):
            t,k=steps[m]; mr=m+RA
            if mr in [S(c) for c in range(9)]:
                c=[S(c) for c in range(9)].index(mr); e.wait_vm_tag(('G',c)); e.wait_lg_tag(('a',c-1)); e("s_barrier"); xreads(e,c)
            if m==97+N3: e("s_barrier")
            if mr==144: e.wait_vm_tag('T'); e.wait_lg_tag('b'); e("s_barrier")
            if m in (S(3),S(6),S(9),144,180) and not (opt.get('tsd',0) and m<=S(6)): ts(e,{S(3):2,S(6):3,S(9):4,144:5,180:6}[m])
            if mr<len(steps): frag_read(e,mr)
            a=ACC+16*slot[t]; r=FR+4*(m%NR); xr=XFR+4*k
            cin = f"v[{a}:{a+15}]" if k>0 else "0"
            if H: e(f"v_mfma_f32_32x32x16_bf16 v[{a}:{a+15}], v[{r}:{r+3}], v[{xr}:{xr+3}], {cin}")
            else: e(f"v_mfma_f32_32x32x16_bf16 v[{a}:{a+15}], v[{xr}:{xr+3}], v[{r}:{r+3}], {cin}")
            for f in fill[m]+fl.get(m,[]):
                if callable(f): f(e)
                else: e(f)
    if opt.get('tsd',0): ts(e,3)
    e.wait_vm_tag(('G',0)); e("s_barrier"); ts(e,1); xreads(e,0)
    for m in range(RA): frag_read(e,m)
    if not H:
        run(e,0,216,{})
        ts(e,7)
        for o in epi(5): e(o)
        e("s_waitcnt vmcnt(0)"); ts(e,8); e("s_barrier")
        e(f"s_lshl_b32 s41, s30, 11\ns_lshl_b32 s42, s29, 8\ns_add_u32 s41, s41, s42\ns_add_u32 s41, s41, {UF2}")
        e("s_cmp_lg_u32 s28, 0\ns_cbranch_scc1 U_NOFLAG")
        e(f"buffer_store_dwordx2 v[{NV}:{NV+1}], v8, s[24:27], s41 offen sc1")
        e.label("U_NOFLAG")
        if opt.get('gtp',1) and opt.get('ox',0):
            pcptr(e,16,"GTR",""); e(f"s_mov_b32 s18, {576*1152}\ns_bfe_u32 s41, s3, 0x10001\ns_mul_i32 s41, s41, {288*1152}\ns_lshl_b32 s42, s55, 3\ns_add_u32 s42, s42, s28\ns_mul_i32 s42, s42, 13824\ns_add_u32 s41, s41, s42\ns_add_u32 s42, s41, 6912")
            e("v_min_u32 v7, 53, v1\nv_lshlrev_b32 v7, 7, v7\nbuffer_load_dword v9, v7, s[16:19], s41 offen\nbuffer_load_dword v7, v7, s[16:19], s42 offen\ns_waitcnt vmcnt(0)")
        elif opt.get('gtp',1):
            pcptr(e,16,"GTR",""); e(f"s_mov_b32 s18, {576*1152}\ns_lshr_b32 s41, s3, 1\ns_mul_i32 s41, s41, {144*1152}\ns_lshl_b32 s42, s55, 3\ns_add_u32 s42, s42, s28\ns_mul_i32 s42, s42, 6912\ns_add_u32 s41, s41, s42")
            e("v_min_u32 v7, 53, v1\nv_lshlrev_b32 v7, 7, v7\nbuffer_load_dword v7, v7, s[16:19], s41 offen\ns_waitcnt vmcnt(0)")
        ts.end(e,9); e("s_endpgm")
        return [e]
    run(e,0,FORK,{})
    e("s_cmp_ge_u32 s28, 4\ns_cbranch_scc1 G2_LOAD")
    el=e.fork(); el.label("G2_LOAD")
    def epi5(e):
        for o in epi(5):
            if callable(o): o(e)
            else: e(o)
    DE=opt.get('de',1)
    dops=[o for t in range(NI,6) for o in epi(t)]
    (g2_compute16 if opt.get('m16',1) else g2_compute)(e,opt,lambda: (run(e,FORK,216,{}),ts(e,7),None if DE else epi5(e)),[flag(t) for t in late],dops)
    g2_loader(el,opt,lambda fl: run(el,FORK,216,fl),dops,{t:flag(t) for t in late})
    return [e,el]

TSZ=4096; SL=40960; NCH=21
def g2_ids(e):
    e("s_and_b32 s29, s3, 1\ns_lshl_b32 s29, s29, 3\ns_and_b32 s42, s54, 7\ns_add_u32 s29, s29, s42\ns_lshr_b32 s30, s54, 3")
def g2_compute(e,opt,finish_g1,lateflags,dops):
    ts=opt['TS']
    finish_g1()
    g2_ids(e)
    B0=32; HB=36; ZB=40; B1=44
    e("v_lshrrev_b32 v9, 5, v1\nv_lshlrev_b32 v9, 8, v9\nv_bfe_u32 v10, v1, 2, 2\nv_lshlrev_b32 v10, 6, v10\nv_add_u32 v9, v9, v10")
    e(f"v_and_b32 v10, 1, v1\nv_lshlrev_b32 v10, 5, v10\nv_add_u32 v9, v9, v10\nv_bfe_u32 v10, v1, 4, 1\nv_lshlrev_b32 v10, 4, v10\nv_add_u32 v9, v9, v10\nv_bfe_u32 v10, v1, 1, 1\nv_lshlrev_b32 v10, 3, v10\nv_add_u32 v{B0}, v9, v10")
    e(f"s_lshl_b32 s42, s28, 12\ns_add_u32 s42, s42, {6*TSZ}\nv_add_u32 v{HB}, s42, v15\nv_add_u32 v{ZB}, s42, v{B0}")
    e(f"v_and_b32 v9, 63, v{B0}\nv_and_b32 v10, 0xffffffc0, v{B0}\nv_lshl_add_u32 v9, v10, 1, v9\nv_bfe_u32 v10, v1, 3, 1\nv_lshl_add_u32 v{B0}, v10, 6, v9\nv_xor_b32 v{B1}, 64, v{B0}")
    for s in range(1,4 if not opt.get('t23',1) else 1): e(f"v_add_u32 v{B0+s}, {s*SL}, v{B0}\nv_add_u32 v{B1+s}, {s*SL}, v{B1}\nv_add_u32 v{HB+s}, {s*SL}, v{HB}\nv_add_u32 v{ZB+s}, {s*SL}, v{ZB}")
    AC=160; F2=64; HFr=16; RA2=opt.get('ra2',6); NR2=RA2+1
    steps=[(n,t) for n in range(81) for t in range(6)]
    T23=opt.get('t23',1); TAG=opt.get('tag',1)
    WB=96; HF2=112; WF=128; NW=RA2//2+1
    if T23:
        e(f"s_and_b32 s43, s28, 1\ns_lshl_b32 s44, s43, 6\nv_xor_b32 v9, s44, v{B0}\nv_xor_b32 v10, 64, v9\ns_lshl_b32 s44, s43, 13\nv_add_u32 v{WB}, s44, v9\ns_lshl_b32 s44, s43, 14\nv_add_u32 v{WB+4}, s44, v10\ns_lshl_b32 s44, s43, 13\ns_add_u32 s44, s44, 8192\nv_add_u32 v{WB+8}, s44, v9")
        e(f"s_lshl_b32 s44, s43, 12\nv_subrev_u32 v{HB}, s44, v{HB}\nv_subrev_u32 v{ZB}, s44, v{ZB}")
        for c in range(3):
            for q in range(1,4): e(f"v_add_u32 v{WB+4*c+q}, {q*SL}, v{WB+4*c}")
        for q in range(1,4): e(f"v_add_u32 v{HB+q}, {q*SL}, v{HB}\nv_add_u32 v{ZB+q}, {q*SL}, v{ZB}")
    def regs23(m):
        n,t=steps[m]
        return WF+4*((3*n+t//2)%NW), HF2+8*(n%2)+4*(t&1), (t&1)*3+t//2
    def frag_read23(m):
        n,t=steps[m]; q=(n//4)%4; o=(n%4)*1024; r,hr,_=regs23(m)
        if t<2:
            oh=o+t*4096
            if n<72: e(f"ds_read_b128 v[{hr}:{hr+3}], v{HB+q} offset:{oh}")
            else: e(f"ds_read_b64_tr_b16 v[{hr}:{hr+1}], v{ZB+q} offset:{oh}\nds_read_b64_tr_b16 v[{hr+2}:{hr+3}], v{ZB+q} offset:{oh+512}")
        if t%2==0:
            b=WB+4*(t//2)+q
            e(f"ds_read_b64_tr_b16 v[{r}:{r+1}], v{b} offset:{2*o}")
            e(f"ds_read_b64_tr_b16 v[{r+2}:{r+3}], v{b} offset:{2*o+1024}")
    def frag_read(m):
        if T23: return frag_read23(m)
        n,t=steps[m]; q=(n//4)%4; o=(n%4)*1024; r=F2+4*(m%NR2)
        if t==0:
            hr=HFr+4*(n%2)
            if n<72: e(f"ds_read_b128 v[{hr}:{hr+3}], v{HB+q} offset:{o}")
            else: e(f"ds_read_b64_tr_b16 v[{hr}:{hr+1}], v{ZB+q} offset:{o}\nds_read_b64_tr_b16 v[{hr+2}:{hr+3}], v{ZB+q} offset:{o+512}")
        b=(B1 if t&1 else B0)+q; o=2*o+(t//2)*8192
        e(f"ds_read_b64_tr_b16 v[{r}:{r+1}], v{b} offset:{o}")
        e(f"ds_read_b64_tr_b16 v[{r+2}:{r+3}], v{b} offset:{o+1024}")
    def xsetup(e):
        e("s_mul_i32 s44, s29, 3\ns_add_u32 s44, s44, s30")
        e(f"s_mul_i32 s45, s44, {16*12288}\ns_mul_i32 s42, s28, 3072\ns_add_u32 s45, s45, s42\ns_add_u32 s45, s45, {P_OFF}\ns_mul_i32 s42, s55, {4*12288}\ns_add_u32 s46, s45, s42\ns_mul_i32 s42, s55, 12288\ns_add_u32 s45, s45, s42")
        if TAG:
            e(f"s_lshl_b32 s45, s44, 18\ns_lshl_b32 s42, s28, 12\ns_add_u32 s45, s45, s42\ns_add_u32 s45, s45, {P2_OFF}\ns_lshl_b32 s42, s55, 16\ns_add_u32 s46, s45, s42\ns_lshl_b32 s42, s55, 14\ns_add_u32 s45, s45, s42")
            e(f"v_lshlrev_b32 v5, 13, v{NV+1}\nv_xor_b32 v51, v5, v{NV}")
            for p in range(1,12): e(f"v_mov_b32 v{51+4*p}, v51")
        e(f"s_lshl_b32 s47, s44, 2\ns_add_u32 s47, s47, s28\ns_lshl_b32 s47, s47, 7\ns_add_u32 s47, s47, {XF}\ns_lshl_b32 s42, s55, 3\ns_add_u32 s49, s47, s42")
        if T23: e("s_lshl_b32 s48, s29, 2\ns_and_b32 s42, s28, 2\ns_add_u32 s48, s48, s42\ns_mul_i32 s48, s48, 1152\ns_mul_i32 s42, s30, 384\ns_add_u32 s48, s48, s42\ns_and_b32 s42, s28, 1\ns_mul_i32 s42, s42, 192\ns_add_u32 s48, s48, s42")
        else: e("s_lshl_b32 s48, s29, 2\ns_add_u32 s48, s48, s28\ns_mul_i32 s48, s48, 1152\ns_mul_i32 s42, s30, 384\ns_add_u32 s48, s48, s42")
        e("v_and_b32 v5, 31, v1\ns_mov_b32 s42, 73728\nv_mul_lo_u32 v7, v5, s42\nv_lshrrev_b32 v6, 5, v1\nv_lshl_add_u32 v7, v6, 5, v7")
        e("v_min_u32 v5, 2, v1\nv_cmp_le_u32 vcc, s55, v5\nv_addc_co_u32 v5, vcc, 0, v5, vcc\nv_lshlrev_b32 v5, 3, v5")
        srd(e,20,98,2048*1152)
    fl={}
    LF=[int(v) for v in str(opt.get('lf','50,100,190')).split(',')][-len(lateflags):]
    for p,f in zip(LF,lateflags): fl[p]=f
    D0,D1=opt.get('d0',1),opt.get('d1',95); assert D1<200 and LF[-1]>D1 and (len(dops)<100 or LF[-2]>(D0+D1)//2)
    fl2={}
    for o,p in zip(dops,spread(len(dops),D0,D1)): fl2.setdefault(p,[]).append(o)
    fl[200]=xsetup
    if opt.get('pw2',3)==1:
        e("v_min_u32 v48, 17, v1\nv_lshlrev_b32 v48, 7, v48")
        for t in range(2,6):
            fl[max(72*(t-2)+opt.get('jp',2),t)]=lambda e,t=t: e(f"s_add_u32 s42, s56, {t*36864}\nbuffer_load_dword v{47+t}, v48, s[12:15], s42 offen")
    e("s_barrier"); ts(e,8)
    for m in range(RA2): frag_read(m)
    for m,(n,t) in enumerate(steps):
        mr=m+RA2
        if m in (144,288,432): ts(e,{144:9,288:10,432:11}[m])
        if mr<len(steps):
            if mr%24==0: e("s_barrier")
            frag_read(mr)
        a=AC+16*t; r=F2+4*(m%NR2); hr=HFr+4*(n%2)
        if T23: r,hr,ti=regs23(m); a=AC+16*ti
        cin=f"v[{a}:{a+15}]" if n>0 else "0"
        e(f"v_mfma_f32_32x32x16_bf16 v[{a}:{a+15}], v[{r}:{r+3}], v[{hr}:{hr+3}], {cin}")
        for o in fl2.get(m,[]):
            if callable(o): o(e)
            else: e(o)
        if m in fl: fl[m](e)
    ts(e,12)
    e("s_cmp_eq_u32 s55, 1\ns_cbranch_scc1 XV1\ns_cmp_eq_u32 s55, 2\ns_cbranch_scc1 XV2\ns_cmp_eq_u32 s55, 3\ns_cbranch_scc1 XV3")
    txt=[]
    for ks in range(4):
        x=e.fork()
        if ks: x.label(f"XV{ks}")
        if TAG:
            oth=[d for d in range(4) if d!=ks]
            for i,d in enumerate(oth):
                x(f"s_add_u32 s42, s45, {d*65536}")
                for p in range(4):
                    Q=48+16*i+4*p
                    for z in range(3):
                        a=AC+24*d+2*(3*p+z); x(f"v_cvt_pk_bf16_f32 v{Q+z}, v{a}, v{a+1}")
                    x(f"buffer_store_dwordx4 v[{Q}:{Q+3}], v15, s[24:27], s42 offen offset:{p*1024} sc1")
            lds=[]
            for i,sr in enumerate(oth):
                x(f"s_add_u32 s{50+i}, s46, {sr*16384}")
                L=[f"buffer_load_dwordx4 v[{96+16*i+4*p}:{99+16*i+4*p}], v15, s[24:27], s{50+i} offen offset:{p*1024} sc1" for p in range(4)]
                for l in L: x(l, tag=('R',i))
                lds.append(L)
            for i in range(3):
                R=96+16*i; uid[0]+=1; u=uid[0]
                x.wait_vm_tag(('R',i))
                chk=f"v_xor_b32 v16, v51, v{R+3}\n v_xor_b32 v17, v51, v{R+7}\n v_xor_b32 v18, v51, v{R+11}\n v_xor_b32 v19, v51, v{R+15}\n v_or3_b32 v16, v16, v17, v18\n v_or_b32 v16, v16, v19\n v_cmp_eq_u32 vcc, 0, v16\n"
                x(chk)
                x(f"s_cmp_eq_u64 vcc, -1\ns_cbranch_scc1 XOK{u}")
                x.raw(f"s_mov_b32 s53, 0\nXSP{u}:\n s_sleep {opt.get('xs',1)}\n "+"\n ".join(lds[i])+f"\n s_add_u32 s53, s53, 1\n s_waitcnt vmcnt(0)\n {chk} s_cmp_ge_u32 s53, 0x40000\n s_cbranch_scc1 XOK{u}\n s_nop 1\n s_cmp_eq_u64 vcc, -1\n s_cbranch_scc0 XSP{u}\nXOK{u}:")
                for k in range(12):
                    P=R+4*(k//3)+k%3; a=AC+24*ks+2*k; t=16+2*(k%4)
                    x(f"v_lshlrev_b32 v{t}, 16, v{P}\nv_and_b32 v{t+1}, 0xffff0000, v{P}\nv_add_f32 v{a}, v{a}, v{t}\nv_add_f32 v{a+1}, v{a+1}, v{t+1}")
                    if i==2 and k%4==3:
                        uu=k//4; U=3*ks+uu; a=AC+8*U; Q=32+4*uu
                        for p in range(4): x(f"v_cvt_pk_bf16_f32 v{Q+p}, v{a+2*p}, v{a+2*p+1}")
                        x(f"buffer_store_dwordx4 v[{Q}:{Q+3}], v7, s[20:23], s48 offen offset:{((U//6)*1152+((U//2)%3)*64 if T23 else (U//2)*64)+(U%2)*16}")
            ts.end(x,13); x("s_endpgm")
            txt.append(x.text()); continue
        i=0
        for u in range(12):
            d=u//3
            if d==ks: continue
            a=AC+8*u; P=64+4*i; i+=1
            for p in range(4): x(f"v_cvt_pk_bf16_f32 v{P+p}, v{a+2*p}, v{a+2*p+1}")
            if u%3==0: x(f"s_add_u32 s42, s45, {d*4*12288}")
            x(f"buffer_store_dwordx4 v[{P}:{P+3}], v15, s[24:27], s42 offen offset:{(u%3)*1024} sc1")
        x("s_waitcnt vmcnt(0)")
        x(f"buffer_store_dwordx2 v[{NV}:{NV+1}], v8, s[24:27], s49 offen sc1")
        check_spin(x,10,5,"s47",0)
        i=0
        for s in range(4):
            if s==ks: continue
            x(f"s_add_u32 s42, s46, {s*12288}")
            for u in range(3):
                P=112+4*(3*i+u); x(f"buffer_load_dwordx4 v[{P}:{P+3}], v15, s[24:27], s42 offen offset:{u*1024} sc1")
            i+=1
        for i in range(3):
            for u in range(3):
                a=AC+8*(3*ks+u); P=112+4*(3*i+u)
                for p in range(4):
                    x(f"v_lshlrev_b32 v{16+2*p}, 16, v{P+p}\nv_and_b32 v{17+2*p}, 0xffff0000, v{P+p}")
                for p in range(8): x(f"v_add_f32 v{a+p}, v{a+p}, v{16+p}")
                if i==2:
                    Q=64+4*u; U=3*ks+u
                    for p in range(4): x(f"v_cvt_pk_bf16_f32 v{Q+p}, v{a+2*p}, v{a+2*p+1}")
                    x(f"buffer_store_dwordx4 v[{Q}:{Q+3}], v7, s[20:23], s48 offen offset:{((U//6)*1152+((U//2)%3)*64 if T23 else (U//2)*64)+(U%2)*16}")
        ts.end(x,13); x("s_endpgm")
        txt.append(x.text())
    e.raw('\n'.join(txt))
def g2_compute16(e,opt,finish_g1,lateflags,dops):
    ts=opt['TS']
    finish_g1()
    g2_ids(e)
    WB=96; HB=108; ZB=110; HF2=112; WF=144; AC=160
    e("v_lshrrev_b32 v9, 5, v1\nv_lshlrev_b32 v11, 10, v9\nv_bfe_u32 v10, v1, 2, 3\nv_lshlrev_b32 v12, 7, v10\nv_lshl_add_u32 v12, v9, 11, v12")
    e("v_bfe_u32 v13, v1, 3, 1\nv_lshl_add_u32 v12, v13, 6, v12\nv_bfe_u32 v13, v1, 4, 1\nv_lshl_add_u32 v12, v13, 5, v12\nv_and_b32 v14, 3, v1\nv_lshl_add_u32 v12, v14, 3, v12")
    e("s_and_b32 s43, s28, 1\ns_lshl_b32 s44, s43, 6\nv_xor_b32 v12, s44, v12")
    for mi in range(6):
        e(f"v_xor_b32 v{WB+2*mi}, {32*(mi&3)}, v12\ns_mul_i32 s44, s43, {8192*(((mi+6)>>2)-(mi>>2))}\ns_add_u32 s44, s44, {8192*(mi>>2)}\nv_add_u32 v{WB+2*mi}, s44, v{WB+2*mi}\nv_add_u32 v{WB+2*mi+1}, {2*SL}, v{WB+2*mi}")
    e(f"s_and_b32 s42, s28, 2\ns_lshl_b32 s42, s42, 12\ns_add_u32 s42, s42, {6*TSZ}\nv_add_u32 v11, s42, v11")
    e(f"v_and_b32 v14, 15, v1\nv_lshl_add_u32 v14, v13, 5, v14\nv_lshl_add_u32 v{HB}, v14, 4, v11\nv_add_u32 v{HB+1}, {2*SL}, v{HB}")
    e(f"v_lshl_add_u32 v11, v10, 6, v11\nv_and_b32 v14, 1, v1\nv_lshl_add_u32 v11, v14, 5, v11\nv_bfe_u32 v14, v1, 1, 1\nv_lshl_add_u32 v{ZB}, v14, 3, v11\nv_add_u32 v{ZB+1}, {2*SL}, v{ZB}")
    OX=opt.get('ox',0)
    NS=36 if OX else 41; M=24*NS; LA=12
    rd={}
    def add(p,t): rd.setdefault(p,[]).append(t)
    for sg in range(NS):
        q=(sg//2)%4; so=(q&1)*SL; sl=sg%2; last=(sg==40)
        for mi in range(6):
            f=6*sg+mi; r=WF+4*(f%4); b=WB+2*mi+(q>>1); o=so+4096*sl
            add(4*f-LA,f"ds_read_b64_tr_b16 v[{r}:{r+1}], v{b} offset:{o}")
            if not last: add(4*f-LA+1,f"ds_read_b64_tr_b16 v[{r+2}:{r+3}], v{b} offset:{o+1024}")
        for ni in range(4):
            r=HF2+16*(sg%2)+4*ni; p=24*sg-LA+(2,3,6,7)[ni]; o=so+2048*sl+4096*(ni>>1)
            if sg<36: add(p,f"ds_read_b128 v[{r}:{r+3}], v{HB+(q>>1)} offset:{o+256*(ni&1)}")
            else:
                add(p,f"ds_read_b64_tr_b16 v[{r}:{r+1}], v{ZB+(q>>1)} offset:{o+16*(ni&1)}")
                if not last: add(p,f"ds_read_b64_tr_b16 v[{r+2}:{r+3}], v{ZB+(q>>1)} offset:{o+16*(ni&1)+512}")
    def xsetup(e):
        e("s_mul_i32 s44, s29, 3\ns_add_u32 s44, s44, s30")
        e(f"s_lshl_b32 s45, s44, 18\ns_lshl_b32 s42, s28, 12\ns_add_u32 s45, s45, s42\ns_add_u32 s45, s45, {P2_OFF}\ns_lshl_b32 s42, s55, 16\ns_add_u32 s46, s45, s42\ns_lshl_b32 s42, s55, 14\ns_add_u32 s45, s45, s42")
        if OX:
            e("s_lshl_b32 s48, s29, 2\ns_and_b32 s42, s28, 2\ns_add_u32 s48, s48, s42\ns_lshr_b32 s42, s55, 1\ns_add_u32 s48, s48, s42\ns_mul_i32 s48, s48, 1152\ns_mul_i32 s42, s30, 384\ns_add_u32 s48, s48, s42\ns_and_b32 s42, s28, 1\ns_mul_i32 s43, s42, 3072\ns_mul_i32 s42, s42, 192\ns_add_u32 s48, s48, s42")
            e(f"s_and_b32 s42, s55, 1\ns_mul_i32 s42, s42, 96\ns_add_u32 s48, s48, s42\nv_add_u32 v44, s43, v15\nv_add_u32 v45, {2*SL}, v44")
            srd(e,20,98,2048*1152); return
        e("s_lshl_b32 s48, s29, 2\ns_and_b32 s42, s28, 2\ns_add_u32 s48, s48, s42\ns_lshr_b32 s42, s55, 1\ns_add_u32 s48, s48, s42\ns_mul_i32 s48, s48, 1152\ns_mul_i32 s42, s30, 384\ns_add_u32 s48, s48, s42\ns_and_b32 s42, s28, 1\ns_mul_i32 s42, s42, 192\ns_add_u32 s48, s48, s42")
        e(f"s_and_b32 s42, s55, 1\ns_mul_i32 s42, s42, {16*73728}\ns_add_u32 s48, s48, s42")
        srd(e,20,98,2048*1152)
    xv=[f"v_lshlrev_b32 v5, 13, v{NV+1}",f"v_xor_b32 v51, v5, v{NV}"]+[f"v_mov_b32 v{51+4*p}, v51" for p in range(1,12)]
    xv+=["v_and_b32 v5, 15, v1","s_mov_b32 s42, 73728\nv_mul_lo_u32 v7, v5, s42","v_bfe_u32 v5, v1, 4, 1","v_lshl_add_u32 v7, v5, 5, v7","v_lshrrev_b32 v5, 5, v1","v_lshl_add_u32 v7, v5, 4, v7"]
    if OX: xv=xv[:13]+["v_mov_b32 v46, v51","v_and_b32 v5, 31, v1","s_mov_b32 s42, 73728\nv_mul_lo_u32 v7, v5, s42","v_lshrrev_b32 v5, 5, v1","v_lshl_add_u32 v7, v5, 4, v7"]
    xv2=["v_lshrrev_b32 v5, 5, v1","v_lshlrev_b32 v6, 10, v5"]+[f"v_sub_u32 v{WB+2*mi}, v{WB+2*mi}, v6" for mi in range(6)]+["v_lshlrev_b32 v6, 9, v5",f"v_sub_u32 v{ZB}, v{ZB}, v6"]
    fl={}
    def addf(p,o): fl.setdefault(p,[]).append(o)
    LF=[int(v) for v in str(opt.get('lf','50,100,190')).split(',')][-len(lateflags):]
    D0,D1=opt.get('d0',1),opt.get('d1',95); assert D1<200 and LF[-1]>D1 and (len(dops)<100 or LF[-2]>(D0+D1)//2)
    for o,p in zip(dops,spread(len(dops),2*D0,2*D1)): addf(p,o)
    for p,f in zip(LF,lateflags): addf(2*p,f)
    addf(500,xsetup)
    for i,o in enumerate(xv): addf(504+2*i,o)
    TT=opt.get('tt',0)
    if TT&1: addf(opt.get('ttp',560),"s_lshl_b32 s42, s55, 16\ns_add_u32 s42, s42, s45\nbuffer_load_dword v47, v15, s[24:27], s42 offen")
    if TT&2: addf(opt.get('ttp',560)+8,"buffer_load_dword v43, v7, s[20:23], s48 offen")
    if not OX:
        for i,o in enumerate(xv2): addf(24*36+4+2*i,o)
    e("s_barrier"); ts(e,8)
    for p in range(-LA,0):
        for t in rd.get(p,[]): e(t)
    for m in range(M):
        sg,mi,ni=m//24,(m%24)//4,m%4
        if m in (288,576,864): ts(e,{288:9,576:10,864:11}[m])
        if (m+LA)%48==0 and m+LA<M:
            if opt.get('l3',2)==1 or (opt.get('l3',2)==2 and OX and m+LA==17*48): e("s_waitcnt lgkmcnt(0)")
            e("s_barrier")
        for t in rd.get(m,[]): e(t)
        a=AC+4*(6*ni+mi); r=WF+4*((6*sg+mi)%4); hr=HF2+16*(sg%2)+4*ni
        cin=f"v[{a}:{a+3}]" if sg>0 else "0"
        if sg<40: e(f"v_mfma_f32_16x16x32_bf16 v[{a}:{a+3}], v[{r}:{r+3}], v[{hr}:{hr+3}], {cin}")
        else: e(f"v_mfma_f32_16x16x16_bf16 v[{a}:{a+3}], v[{r}:{r+1}], v[{hr}:{hr+1}], {cin}")
        for o in fl.get(m,[]):
            if callable(o): o(e)
            else: e(o)
    if OX: return g2_tail_ox(e,opt,AC,ZB)
    ts(e,12)
    e("s_cmp_eq_u32 s55, 1\ns_cbranch_scc1 XV1\ns_cmp_eq_u32 s55, 2\ns_cbranch_scc1 XV2\ns_cmp_eq_u32 s55, 3\ns_cbranch_scc1 XV3")
    txt=[]
    for ks in range(4):
        x=e.fork()
        if ks: x.label(f"XV{ks}")
        oth=[d for d in range(4) if d!=ks]
        for i,d in enumerate(oth):
            x(f"s_add_u32 s42, s45, {d*65536}")
            for p in range(4):
                Q=48+16*i+4*p
                for z in range(3):
                    a=AC+24*d+2*(3*p+z); x(f"v_cvt_pk_bf16_f32 v{Q+z}, v{a}, v{a+1}")
                x(f"buffer_store_dwordx4 v[{Q}:{Q+3}], v15, s[24:27], s42 offen offset:{p*1024} sc1")
        lds=[]
        if opt.get('xd',0): x(f"s_sleep {opt['xd']}")
        if opt.get('xv',-1)>=0: x(f"s_waitcnt vmcnt({opt['xv']})")
        for i,sr in enumerate(oth):
            x(f"s_add_u32 s{50+i}, s46, {sr*16384}")
            L=[f"buffer_load_dwordx4 v[{96+16*i+4*p}:{99+16*i+4*p}], v15, s[24:27], s{50+i} offen offset:{p*1024} sc1" for p in range(4)]
            for l in L: x(l, tag=('R',i))
            lds.append(L)
        for i in range(3):
            R=96+16*i; uid[0]+=1; u=uid[0]
            x.wait_vm_tag(('R',i))
            chk=f"v_xor_b32 v16, v51, v{R+3}\n v_xor_b32 v17, v51, v{R+7}\n v_xor_b32 v18, v51, v{R+11}\n v_xor_b32 v19, v51, v{R+15}\n v_or3_b32 v16, v16, v17, v18\n v_or_b32 v16, v16, v19\n v_cmp_eq_u32 vcc, 0, v16\n"
            x(chk)
            x(f"s_cmp_eq_u64 vcc, -1\ns_cbranch_scc1 XOK{u}")
            x.raw(f"s_mov_b32 s53, 0\nXSP{u}:\n s_sleep {opt.get('xs',1)}\n "+"\n ".join(lds[i])+f"\n s_add_u32 s53, s53, 1\n s_waitcnt vmcnt(0)\n {chk} s_cmp_ge_u32 s53, 0x40000\n s_cbranch_scc1 XOK{u}\n s_nop 1\n s_cmp_eq_u64 vcc, -1\n s_cbranch_scc0 XSP{u}\nXOK{u}:")
            for k in range(12):
                P=R+4*(k//3)+k%3; a=AC+24*ks+2*k; t=16+2*(k%4)
                x(f"v_lshlrev_b32 v{t}, 16, v{P}\nv_and_b32 v{t+1}, 0xffff0000, v{P}\nv_add_f32 v{a}, v{a}, v{t}\nv_add_f32 v{a+1}, v{a+1}, v{t+1}")
                if i==2 and k%4==3:
                    uu=k//4; a=AC+24*ks+8*uu; Q=32+4*uu
                    for p in range(4): x(f"v_cvt_pk_bf16_f32 v{Q+p}, v{a+2*p}, v{a+2*p+1}")
                    x(f"v_permlane16_swap_b32 v{Q}, v{Q+2}\nv_permlane16_swap_b32 v{Q+1}, v{Q+3}")
                    x(f"buffer_store_dwordx4 v[{Q}:{Q+3}], v7, s[20:23], s48 offen offset:{uu*64}")
        ts.end(x,13); x("s_endpgm")
        txt.append(x.text())
    e.raw('\n'.join(txt))
def g2_tail_ox(e,opt,AC,ZB):
    ts=opt['TS']; ts(e,11)
    SETS=[112,132,16]; NSET=3
    def reads(x,s):
        E,ss=s//4,s%4; q=(18+E)%4; so=(q&1)*SL; r=SETS[s%NSET]
        for n in range(2):
            o=so+4096*(ss>>1)+2048*(ss&1)+16*n
            x(f"ds_read_b64_tr_b16 v[{r+12+4*n}:{r+13+4*n}], v{ZB+(q>>1)} offset:{o}\nds_read_b64_tr_b16 v[{r+14+4*n}:{r+15+4*n}], v{ZB+(q>>1)} offset:{o+512}")
        for mm in range(3): x(f"ds_read_b128 v[{r+4*mm}:{r+4*mm+3}], v{44+(q>>1)} offset:{so+6144*ss+1024*mm}")
    e("s_barrier")
    for s in range(NSET-1): reads(e,s)
    e("s_cmp_eq_u32 s55, 1\ns_cbranch_scc1 XV1\ns_cmp_eq_u32 s55, 2\ns_cbranch_scc1 XV2\ns_cmp_eq_u32 s55, 3\ns_cbranch_scc1 XV3")
    def acc(d,k):
        mm,n=k>>2,(k>>1)&1; return AC+4*(6*(2*(d>>1)+n)+3*(d&1)+mm)+2*(k&1)
    txt=[]; XL=opt.get('xl',12)
    for ks in range(4):
        x=e.fork()
        if ks: x.label(f"XV{ks}")
        oth=[d for d in range(4) if d!=ks]
        if opt.get('xo',0): oth=[ks^1,ks^2,ks^3]
        XW=opt.get('xw',0); XP=opt.get('xp',0)
        snd={}
        for i,d in enumerate(oth):
            for p in range(4):
                Q=48+16*i+4*p; t=f"s_add_u32 s42, s45, {d*65536}\n" if p==0 else ""
                for z in range(3):
                    a=acc(d,3*p+z); t+=f"v_cvt_pk_bf16_f32 v{Q+z}, v{a}, v{a+1}\n"
                t+=f"buffer_store_dwordx4 v[{Q}:{Q+3}], v15, s[24:27], s42 offen offset:{p*1024} sc1"
                snd.setdefault(XW+(4*i+p)*XP//4,[]).append(t)
        assert max(snd)<=min(XL,18)
        RB=AC+48*(1-(ks>>1)); lds=[]
        for i,sr in enumerate(oth):
            lds.append([f"buffer_load_dwordx4 v[{RB+16*i+4*p}:{RB+3+16*i+4*p}], v15, s[24:27], s{50+i} offen offset:{p*1024} sc1" for p in range(4)])
            x(f"s_add_u32 s{50+i}, s46, {sr*16384}")
        def rcv():
            for i in range(3):
                for l in lds[i]: x(l, tag=('R',i))
        for s in range(18):
            sr_=s+NSET-1
            if sr_<18:
                if sr_%4==0: x("s_waitcnt lgkmcnt(0)\ns_barrier" if opt.get('l3',2) else "s_barrier")
                reads(x,sr_)
            for t in snd.get(s,[]): x(t)
            if s==XL: rcv()
            r=SETS[s%NSET]
            for mm in range(3):
                for n in range(2):
                    a=acc(ks,4*mm+2*n)
                    x(f"v_mfma_f32_16x16x32_bf16 v[{a}:{a+3}], v[{r+4*mm}:{r+4*mm+3}], v[{r+12+4*n}:{r+15+4*n}], v[{a}:{a+3}]")
        for t in snd.get(18,[]): x(t)
        if XL>=18: rcv()
        ts(x,12)
        for i in range(3):
            R=RB+16*i; uid[0]+=1; u=uid[0]
            x.wait_vm_tag(('R',i))
            chk=f"v_xor_b32 v16, v46, v{R+3}\n v_xor_b32 v17, v46, v{R+7}\n v_xor_b32 v18, v46, v{R+11}\n v_xor_b32 v19, v46, v{R+15}\n v_or3_b32 v16, v16, v17, v18\n v_or_b32 v16, v16, v19\n v_cmp_eq_u32 vcc, 0, v16\n"
            x(chk)
            x(f"s_cmp_eq_u64 vcc, -1\ns_cbranch_scc1 XOK{u}")
            x.raw(f"s_mov_b32 s53, 0\nXSP{u}:\n s_sleep {opt.get('xs',4)}\n "+"\n ".join(lds[i])+f"\n s_add_u32 s53, s53, 1\n s_waitcnt vmcnt(0)\n {chk} s_cmp_ge_u32 s53, 0x40000\n s_cbranch_scc1 XOK{u}\n s_nop 1\n s_cmp_eq_u64 vcc, -1\n s_cbranch_scc0 XSP{u}\nXOK{u}:")
            for k in range(12):
                P=R+4*(k//3)+k%3; a=acc(ks,k); t=16+2*(k%4)
                x(f"v_lshlrev_b32 v{t}, 16, v{P}\nv_and_b32 v{t+1}, 0xffff0000, v{P}\nv_add_f32 v{a}, v{a}, v{t}\nv_add_f32 v{a+1}, v{a+1}, v{t+1}")
                if i==2 and k%4==3:
                    uu=k//4; Q=32+4*uu
                    for p in range(4): a=acc(ks,4*uu+p); x(f"v_cvt_pk_bf16_f32 v{Q+p}, v{a}, v{a+1}")
                    x(f"v_permlane16_swap_b32 v{Q}, v{Q+2}\nv_permlane16_swap_b32 v{Q+1}, v{Q+3}")
                    x(f"buffer_store_dwordx4 v[{Q}:{Q+3}], v7, s[20:23], s48 offen offset:{uu*32}")
        ts.end(x,13); x("s_endpgm")
        txt.append(x.text())
    e.raw('\n'.join(txt))
def g2_loader(e,opt,run_g1,epi5,lateflags):
    ts=opt['TS']
    OX=opt.get('ox',0); NCH=23 if OX else 21
    def setup(e):
        g2_ids(e)
        e("s_sub_u32 s32, s28, 4")
        e("v_lshrrev_b32 v5, 2, v1\nv_and_b32 v0, 3, v1\nv_lshlrev_b32 v0, 4, v0\nv_mul_u32_u24 v4, 1152, v5\nv_add_u32 v4, v4, v0\nv_and_b32 v0, 1, v1\nv_lshlrev_b32 v0, 10, v0\nv_lshl_add_u32 v7, v5, 12, v0\nv_bfe_u32 v0, v1, 1, 1\nv_lshl_add_u32 v7, v0, 4, v7")
        e("v_lshrrev_b32 v5, 3, v1\nv_mul_u32_u24 v4, 1152, v5\nv_bfe_u32 v5, v1, 4, 1\nv_lshlrev_b32 v5, 2, v5\nv_and_b32 v0, 7, v1\nv_xor_b32 v0, v0, v5")
        if opt.get('m16',1): e("v_lshrrev_b32 v5, 5, v1\nv_lshlrev_b32 v5, 1, v5\nv_xor_b32 v0, v0, v5")
        e("v_lshl_add_u32 v4, v0, 4, v4")
        e("v_min_u32 v0, 5, v1\nv_lshlrev_b32 v0, 3, v0\nv_min_u32 v5, 36, v1\nv_lshlrev_b32 v5, 3, v5")
        e("s_lshl_b32 s33, s29, 2\ns_add_u32 s33, s33, s32")
        e(f"s_lshl_b32 s39, s33, 2\ns_add_u32 s39, s39, s55\ns_lshl_b32 s39, s39, 9\ns_add_u32 s39, s39, {HF}")
        e(f"s_and_b32 s40, s33, 31\ns_lshl_b32 s40, s40, 5\ns_lshr_b32 s42, s33, 5\ns_lshl_b32 s42, s42, 11\ns_add_u32 s40, s40, s42\ns_mul_i32 s42, s55, {144*4096}\ns_add_u32 s40, s40, s42\ns_add_u32 s40, s40, {ZT_OFF}")
        e("s_mul_i32 s33, s33, 294912\ns_mul_i32 s42, s55, 73728\ns_add_u32 s33, s33, s42")
        e(f"s_lshl_b32 s34, s32, 12\ns_add_u32 s34, s34, {6*TSZ}\ns_lshl_b32 s36, s32, 11")
        e(f"s_lshr_b32 s42, s32, 1\ns_mul_i32 s35, s42, {192*1152}\ns_and_b32 s42, s32, 1\ns_mul_i32 s42, s42, {16*1152}\ns_add_u32 s35, s35, s42\ns_mul_i32 s42, s55, {1152*1152}\ns_add_u32 s35, s35, s42\ns_mul_i32 s43, s30, 384\ns_add_u32 s35, s35, s43")
        e(f"s_mul_i32 s44, s55, {144*1152}\ns_add_u32 s44, s44, s43\ns_mul_i32 s42, s32, {16*1152}\ns_add_u32 s43, s44, s42")
        e(f"s_mov_b32 s47, {ZF}")
        if OX:
            e(f"s_lshl_b32 s40, s29, 2\ns_and_b32 s42, s32, 2\ns_add_u32 s40, s40, s42\ns_lshr_b32 s42, s55, 1\ns_add_u32 s42, s40, s42\ns_and_b32 s40, s42, 31\ns_lshl_b32 s40, s40, 5\ns_lshr_b32 s42, s42, 5\ns_lshl_b32 s42, s42, 11\ns_add_u32 s40, s40, s42\ns_add_u32 s40, s40, {ZT_OFF}")
            e(f"s_and_b32 s42, s32, 1\ns_lshl_b32 s44, s42, 17\ns_add_u32 s44, s44, s40\ns_lshl_b32 s42, s42, 18\ns_add_u32 s40, s40, s42")
            e(f"s_and_b32 s42, s55, 1\ns_mul_i32 s42, s42, 3\ns_add_u32 s42, s42, s30\ns_mul_i32 s42, s42, {18*6144}\ns_mul_i32 s43, s32, 6144\ns_mul_i32 s48, s32, 3072\ns_add_u32 s49, s42, s48\ns_add_u32 s49, s49, {4*24576}\ns_add_u32 s43, s43, s42")
    RWM=opt.get('rw',0); RW=[]
    if RWM==1: RW=[(n,t) for n in range(2,18) for t in ((0,3,1,4) if n<4 else (0,3))]
    if RWM==2: RW=[(n,t) for n in range(2,14) for t in (0,3,1)]
    if RWM==3: RW=[(n,t) for n in range(2,11) for t in (0,3,1,4)]
    if RWM==4: RW=[(n,t) for n in range(2,18) for t in (0,3)]
    if RWM==5: RW=[(n,t) for n in range(2,14) for t in (0,3)]
    assert len(RW)<=36
    def rwload(i):
        n,t=RW[i]; pp,z=t%3,t//3
        return f"s_add_u32 s38, s35, {(384*(n%3)+32*(n//3))*1152+z*9216}\nbuffer_load_dwordx4 v[{XFR+4*i}:{XFR+4*i+3}], v4, s[12:15], s38 offen offset:{pp*128}"
    def wpart(c):
        so=(c%4)*SL; L=[]
        if OX and c>=18:
            def f(e):
                for h in range(2 if c<22 else 1):
                    if c<22: e(f"s_add_u32 s37, s43, {(c-18)*24576+h*3072}\ns_lshl_b32 s42, s48, 1\ns_add_u32 m0, s42, {so+h*3072}")
                    else: e(f"s_mov_b32 s37, s49\ns_add_u32 m0, s48, {so}")
                    for t in range(3): e(f"buffer_load_dwordx4 v15, s[16:19], s37 offen offset:{t*1024} lds", tag=c)
            return [f]
        if c<18: sb,lit,R="s35",(384*(c%3)+32*(c//3))*1152,12
        else: sb,lit,R="s43",64*(c-18)*1152,16
        if c<20:
            for t in range(6):
                def f(e,t=t):
                    pp,z=t%3,t//3
                    if pp==0: e(f"s_add_u32 s37, {sb}, {lit+z*9216}")
                    if (c,t) in RW:
                        r=XFR+4*RW.index((c,t))
                        e(f"ds_write_b128 v{12+2*((c%4)>>1)}, v[{r}:{r+3}] offset:{(c%2)*SL+pp*8192+z*1024}", tag=('w',c)); return
                    e(f"s_add_u32 m0, s36, {(so+pp*8192+z*1024-pp*128)&0xffffffff}")
                    e(f"buffer_load_dwordx4 v4, s[{R}:{R+3}], s37 offen offset:{pp*128} lds", tag=c)
                L.append(f)
        else:
            def f(e):
                for z in range(2):
                    if z==0: e("s_mov_b32 s42, s32")
                    else: e("s_add_u32 s42, s32, 4\ns_min_u32 s42, s42, 5")
                    e(f"s_and_b32 s38, s42, 1\ns_lshr_b32 s42, s42, 1\ns_mul_i32 s37, s38, 9216\ns_add_u32 s37, s37, s44\ns_add_u32 s37, s37, {128*1152}\ns_lshl_b32 s38, s38, 10\ns_lshl_b32 s48, s42, 7\ns_add_u32 s37, s37, s48\ns_lshl_b32 s42, s42, 13\ns_add_u32 s42, s42, s38\ns_add_u32 m0, s42, {so}")
                    e("buffer_load_dwordx4 v4, s[16:19], s37 offen lds", tag=c)
            L.append(f)
        return L
    hld=opt.get('hld','')
    def hpart(c,e):
        so=(c%4)*SL
        if c<18:
            e(f"s_add_u32 s38, s33, {c*4096}\ns_add_u32 m0, s34, {so}")
            for kk in range(4): e(f"buffer_load_dwordx4 v15, s[24:27], s38 offen offset:{kk*1024} {hld} lds", tag=c)
        elif OX:
            for kk in range(4 if c<22 else 2):
                if c<22: e(f"s_add_u32 s38, s40, {(128*(c-18)+16*kk)*4096}\ns_add_u32 m0, s34, {so+kk*1024}")
                else: e(f"s_add_u32 s38, s44, {(512+16*kk)*4096}\ns_and_b32 s42, s32, 1\ns_lshl_b32 s42, s42, 11\ns_sub_u32 s42, s34, s42\ns_add_u32 m0, s42, {so+kk*1024}")
                e(f"buffer_load_dwordx4 v7, s[24:27], s38 offen {hld} lds", tag=c)
        else:
            for kk in range(4 if c<20 else 1):
                e(f"s_add_u32 s38, s40, {(64*(c-18)+16*kk)*4096}\ns_add_u32 m0, s34, {so+kk*1024}")
                e(f"buffer_load_dwordx4 v7, s[24:27], s38 offen {hld} lds", tag=c)
    fl={180:[setup]}
    W=[f for c in range(2) for f in wpart(c)]
    for i,f in enumerate(W): fl.setdefault(181+i,[]).append(f)
    for i in range(len(RW)): fl.setdefault(min(180+i+opt.get('rwd',0),215),[]).append(rwload(i))
    fl.setdefault(opt.get('p0i',190),[]).append(lambda e: poll_issue(e,10,0,"s39",0))
    PCK=opt.get('p0c',200)
    fl.setdefault(PCK,[]).append(lambda e: check_spin(e,10,0,"s39",0,issue=False))
    for c in range(2): fl.setdefault(min(PCK+2*c,215),[]).append(lambda e,c=c: hpart(c,e))
    fl.setdefault(215,[]).append(lambda e: poll_issue(e,10,0,"s39",48))
    if opt.get('sp',144)==180: fl[180].insert(0,"s_setprio 1")
    run_g1(fl); ts(e,7)
    if not opt.get('de',1): epi5()
    late=dict(lateflags)
    if RW: e(f"v_add_u32 v12, s36, v15\nv_add_u32 v14, {2*SL}, v12")
    for c in range(NCH):
        e.wait_vm_tag(c); e.wait_lg_tag(('w',c)); e("s_barrier")
        LT=[int(v) for v in str(opt.get('lts','0,6,12,18')).split(',')]
        if c in LT: ts(e,8+LT.index(c))
        L3=opt.get('l3',2); ZC=opt.get('zc',16)
        if L3==2 and not OX: L3=0
        for n in [n for n in range(2,NCH) if c==(n-2 if (not L3 or (L3==2 and n<20)) else max(n-3,0,ZC if n>=18 else 0))]:
            if n<18 and n%3==0: check_spin(e,10,0,"s39",(n//3)*48,issue=False)
            if n==18: check_spin(e,10,5,"s47",0,issue=False)
            if 2<n<15 and n%3==2: poll_issue(e,10,0,"s39",(n//3+1)*48)
            if n==17 and L3!=1: poll_issue(e,10,5,"s47",0)
            for f in wpart(n): f(e)
            hpart(n,e)
        if L3==1 and c==ZC-1: poll_issue(e,10,5,"s47",0)
        DC,DN=opt.get('dc',0),opt.get('dn',2)
        if DC<=c<DC+DN and opt.get('de',1):
            if opt.get('sp',144) and c==DC: e("s_setprio 0")
            for o in epi5[(c-DC)*len(epi5)//DN:(c-DC+1)*len(epi5)//DN]:
                if callable(o): o(e)
                else: e(o)
        LC=[int(v) for v in str(opt.get('lc','2,4,7')).split(',')][-len(lateflags):]
        assert LC[-1]>=DC+DN-1 and (len(epi5)<100 or LC[-2]>=DC+DN//2-1+DN%2)
        if c in LC:
            t=min(late); late.pop(t)(e)
    assert not late
    ts.end(e,12); e("s_endpgm")

def fft(e, opt):
    ts=opt['TS']
    C32=0;S32=2048;N32=4096;C64=6144;S64=14336;N64=22528;T1=30720;T2=47104; WL=65536
    e("s_load_dwordx4 s[44:47], s[0:1], 8")
    pcptr(e,12,"FFTTAB","")
    e(f"s_mov_b32 s14, {64*1024}\ns_mov_b32 s15, 0x20000")
    e("v_and_b32 v1, 63, v0\nv_lshlrev_b32 v9, 4, v1\ns_lshl_b32 s42, s28, 13\nv_add_u32 v7, s42, v9\nv_mov_b32 v0, 0")
    e("s_lshl_b32 m0, s28, 13")
    for i in range(4): e(f"buffer_load_dwordx4 v7, s[12:15], 0 offen offset:{i*1024} lds", tag='T')
    e("s_movk_i32 s42, 0x1000\ns_add_u32 m0, m0, s42")
    for i in range(4): e(f"buffer_load_dwordx4 v7, s[12:15], s42 offen offset:{i*1024} lds", tag='T')
    nonce_issue(e,0)
    PA=96; PB=64; WR=32; A1=128; A2=192; GL=131072
    def pk(base,T,ri,t): r=base+16*T+8*ri+4*t; return f"v[{r}:{r+3}]"
    def ac(base,T,ri): r=base+32*T+16*ri; return f"v[{r}:{r+15}]"
    srd(e,16,44,2048*578); srd(e,20,46,2048*578)
    e("s_lshl_b32 s30, s29, 3\ns_add_u32 s30, s30, s28\nv_and_b32 v5, 31, v1\nv_lshrrev_b32 v6, 5, v1")
    e("s_cmp_ge_u32 s29, 32\ns_cbranch_scc1 F_NOPROD")
    e2=e.fork()
    if opt.get('wp',72):
        nonce_check(e,0)
        e(f"s_lshl_b32 s47, s3, 8\ns_add_u32 s47, s47, {SF}\ns_cmp_lg_u32 s28, 0\ns_cbranch_scc1 F_NOSP")
        check_spin(e,10,0,"s47",0,sl=16)
        e.label("F_NOSP"); e("s_barrier")
    e("s_lshr_b32 s31, s29, 3\ns_lshl_b32 s31, s31, 9\ns_bfe_u32 s42, s29, 0x10002\ns_lshl_b32 s42, s42, 7\ns_add_u32 s31, s31, s42\ns_and_b32 s42, s29, 3\ns_lshl_b32 s42, s42, 3\ns_add_u32 s31, s31, s42")
    e("s_and_b32 s42, s28, 3\ns_lshl_b32 s42, s42, 5\ns_add_u32 s31, s31, s42\ns_lshr_b32 s42, s28, 2\ns_lshl_b32 s42, s42, 8\ns_add_u32 s31, s31, s42\ns_mul_i32 s31, s31, 578")
    e(f"v_add_u32 v7, s31, v9\ns_mul_i32 s32, s28, 5120\ns_add_u32 s32, s32, {WL}\ns_movk_i32 s42, 0x1000")
    for ri in range(2):
        e(f"s_add_u32 m0, s32, {ri*40960}")
        for b in range(4): e(f"buffer_load_dwordx4 v7, s[{16+4*ri}:{19+4*ri}], 0 offen offset:{b*1024} lds", tag='T')
        e(f"s_add_u32 m0, s32, {ri*40960+4096}")
        e(f"v_add_u32 v8, s42, v7\nbuffer_load_dwordx4 v8, s[{16+4*ri}:{19+4*ri}], 0 offen lds", tag='T')
    nonce_check(e,0)
    e(f"v_and_b32 v10, 7, v1\nv_lshrrev_b32 v11, 3, v1\ns_lshl_b32 s42, s28, 3\nv_add_u32 v11, s42, v11\nv_mul_u32_u24 v7, 578, v10\nv_lshl_add_u32 v7, v11, 1, v7\nv_add_u32 v7, {WL}, v7\nv_add_u32 v13, 40960, v7")
    e(f"v_lshlrev_b32 v8, 13, v11\nv_lshl_add_u32 v8, v10, 4, v8\nv_cmp_gt_u32 vcc, 33, v11\nv_mov_b32 v12, {hex(OOB)}\nv_cndmask_b32 v12, v12, v8, vcc")
    e(f"s_lshr_b32 s33, s29, 3\ns_lshl_b32 s33, s33, 10\ns_and_b32 s42, s29, 7\ns_lshl_b32 s42, s42, 7\ns_add_u32 s33, s33, s42\ns_add_u32 s33, s33, {WT_OFF}")
    e.wait_vm_tag('T'); e.wait_all(vm=False); e("s_barrier")
    def wrd(i):
        ri,it=i//5,i%5
        for g in range(8): e(f"ds_read_u16{'_d16_hi' if g&1 else ''} v{A1+8*i+g}, v{13 if ri else 7} offset:{g*5120+it*128}")
    wrd(0); wrd(1)
    for i in range(10):
        ri,it=i//5,i%5
        if i+2<10: wrd(i+2)
        for p in range(4): e(f"v_or_b32 v{WR+4*i+p}, v{A1+8*i+2*p}, v{A1+8*i+2*p+1}")
        e(f"s_add_u32 s42, s33, {ri*4096+it*64*8192}\nbuffer_store_dwordx4 v[{WR+4*i}:{WR+4*i+3}], v{12 if it==4 else 8}, s[24:27], s42 offen sc1")
    e(f"v_cmp_eq_u32 vcc, 0, v1\nv_mov_b32 v10, {hex(OOB)}\nv_cndmask_b32 v10, v10, v1, vcc\ns_lshl_b32 s41, s29, 3\ns_add_u32 s41, s41, {XF}")
    e("s_waitcnt vmcnt(0)\ns_barrier\ns_cmp_lg_u32 s28, 0\ns_cbranch_scc1 F_PJOIN")
    e(f"buffer_store_dwordx2 v[{NV}:{NV+1}], v10, s[24:27], s41 offen sc1\ns_branch F_PJOIN")
    e2.label("F_NOPROD"); nonce_check(e2,0); e2.wait_all()
    e.raw(e2.text()); e.label("F_PJOIN"); e.raw("s_nop 4")
    e("v_lshrrev_b32 v8, 3, v1\nv_lshrrev_b32 v10, 1, v8\ns_and_b32 s42, s28, 1\ns_lshl_b32 s42, s42, 2\nv_add_u32 v10, s42, v10\nv_and_b32 v11, 7, v1\nv_xor_b32 v10, v10, v11\nv_lshlrev_b32 v10, 4, v10")
    e("v_lshl_add_u32 v12, v8, 7, v10\nv_mul_u32_u24 v8, 36864, v8\nv_add_u32 v8, v8, v10")
    e(f"s_lshr_b32 s42, s29, 2\ns_lshl_b32 s42, s42, 11\ns_and_b32 s35, s29, 3\ns_lshl_b32 s35, s35, 7\ns_add_u32 s35, s35, s42\ns_mul_i32 s42, s28, {8*36864}\ns_add_u32 s35, s35, s42\ns_add_u32 s35, s35, {U_OFF}\ns_add_u32 s36, s35, {9*2048}")
    e(f"s_lshl_b32 s32, s28, 10\ns_add_u32 s39, s32, {G_OFF}")
    e(f"v_bfe_u32 v15, v1, 1, 3\nv_xor_b32 v13, s28, v15\nv_lshlrev_b32 v13, 4, v13\nv_lshl_add_u32 v13, v5, 7, v13\nv_lshl_add_u32 v13, v6, 13, v13\nv_add_u32 v13, {WL}, v13")
    e(f"v_lshlrev_b32 v4, 2, v6\nv_xor_b32 v4, v4, v15\nv_lshlrev_b32 v4, 4, v4\nv_lshl_add_u32 v4, v5, 7, v4\nv_add_u32 v4, {GL}, v4")
    e(f"s_lshl_b32 s31, s30, 12\ns_add_u32 s33, s31, {288*4096}\ns_cmp_eq_u32 s30, 0\ns_cselect_b32 s33, {hex(OOB)}, s33\ns_cmp_eq_u32 s30, 288\ns_cselect_b32 s33, {hex(OOB)}, s33")
    e(f"s_add_u32 s37, s31, {ZT_OFF}\ns_mov_b32 s38, {ZT_OFF}")
    e("v_lshlrev_b32 v5, 5, v5\nv_lshl_add_u32 v5, v6, 4, v5\nv_add_u32 v6, s33, v5\nv_mov_b32 v0, v9")
    if opt.get('pwv',1):
        e(f"s_lshr_b32 s42, s29, 2\ns_cmp_ge_u32 s42, 6\ns_cselect_b32 s43, 2048, 0\ns_cmp_ge_u32 s42, 3\ns_cselect_b32 s42, 2, 1\ns_lshl_b32 s42, s42, 11\ns_sub_u32 s42, s42, s43\nv_min_u32 v7, 1, v1\nv_mul_u32_u24 v7, s42, v7\ns_lshl_b32 s47, s28, 8\ns_add_u32 s47, s47, s43\ns_add_u32 s47, s47, {UF2}")
        e.wait_all(); e("s_barrier")
        check_spin(e,10,7,"s47",0,sl=opt.get('usl',4))
        ts(e,1)
    else:
        e(f"v_min_u32 v7, 23, v1\nv_lshlrev_b32 v7, 8, v7\ns_mov_b32 s47, {UF2}")
        e.wait_all()
        e("s_cmp_lg_u32 s28, 0\ns_cbranch_scc1 F_NOPOLL")
        check_spin(e,10,7,"s47",0)
        e.label("F_NOPOLL")
        ts(e,1); e("s_barrier")
    for ri in range(2):
        for hf in range(2):
            for h in range(2):
                im=hf*1024+h*512
                e(f"s_add_u32 m0, s32, {WL+((ri*2+hf)*2+h)*8192-im}")
                e(f"buffer_load_dwordx4 v8, s[24:27], s{35+ri} offen offset:{im} sc1 lds", tag='U')
    e(f"s_add_u32 m0, s32, {GL}\nbuffer_load_dwordx4 v12, s[24:27], s39 offen sc1 lds", tag='U')
    e(f"v_min_u32 v14, 31, v1\nv_lshlrev_b32 v14, 3, v14\ns_mov_b32 s47, {XF}")
    check_spin(e,10,14,"s47",0,sl=opt.get('wsl',8))
    e(f"s_min_u32 s42, s30, 288\ns_lshl_b32 s42, s42, 13\ns_add_u32 s42, s42, {WT_OFF}\ns_add_u32 s43, s42, 4096")
    for ri in range(2):
        for mt in range(2):
            for q in range(2):
                r=WR+16*mt+8*ri+4*q; e(f"buffer_load_dwordx4 v[{r}:{r+3}], v0, s[24:27], s{42+ri} offen offset:{mt*2048+q*1024} sc1")
    e.wait_vm_tag('U'); e.wait_all(vm=False); e("s_barrier")
    e("s_cmp_gt_u32 s30, 288\ns_cbranch_scc1 M_END")
    if opt.get('fp',1): e.raw(f"s_cmp_ge_u32 s28, 4\n s_cbranch_scc1 F_LOP\n s_setprio {opt.get('fp',1)}\nF_LOP:")
    for T in range(2):
        for t in range(2):
            for ri in range(2): e(f"ds_read_b128 {pk(PB,T,ri,t)}, v13 offset:{ri*32768+t*16384+T*4096}")
    e(f"s_cmp_lg_u32 s33, {hex(OOB)}\ns_cbranch_scc1 F_NOZ")
    e.raw("s_waitcnt lgkmcnt(0)")
    for T in range(2):
        for r in range(8): e.raw(f" v_mov_b32 v{PB+16*T+8+r}, 0")
    e.raw("s_nop 1"); e.label("F_NOZ")
    def cr(i): return f"v[{8+4*i}:{11+4*i}]"
    def mf(D,A,B,first): e(f"v_mfma_f32_32x32x16_bf16 {D}, {A}, {B}, {'0' if first else D}")
    def ld32():
        for i,o in enumerate([C32,C32+1024,S32,S32+1024,N32,N32+1024]): e(f"ds_read_b128 {cr(i)}, v0 offset:{o}")
    def twid(src,dst,tmp,tab):
        def rd(i): e(f"ds_read_b128 {cr(i%6)}, v0 offset:{tab+i*1024}")
        for i in range(5): rd(i)
        for i in range(16):
            T,rp=i//8,i%8
            if i+5<16: rd(i+5)
            w=8+4*(i%6); ar=src+32*T+2*rp; ai=ar+16; tt=tmp+4*(i%2)
            for u in range(2):
                e(f"v_mul_f32 v{tt+u}, v{ar+u}, v{w+2*u}\nv_mul_f32 v{tt+2+u}, v{ai+u}, v{w+2*u}")
            for u in range(2):
                e(f"v_fma_f32 v{tt+u}, -v{ai+u}, v{w+2*u+1}, v{tt+u}\nv_fma_f32 v{tt+2+u}, v{ar+u}, v{w+2*u+1}, v{tt+2+u}")
            e(f"v_cvt_pk_bf16_f32 v{dst+16*T+rp}, v{tt}, v{tt+1}\nv_cvt_pk_bf16_f32 v{dst+16*T+8+rp}, v{tt+2}, v{tt+3}")
    ld32()
    for T in range(2):
        for t in range(2):
            mf(ac(A1,T,0),pk(PB,T,0,t),cr(t),t==0); mf(ac(A1,T,1),pk(PB,T,1,t),cr(t),t==0)
            mf(ac(A1,T,0),pk(PB,T,1,t),cr(2+t),False); mf(ac(A1,T,1),pk(PB,T,0,t),cr(4+t),False)
    ts(e,2); twid(A1,PA,A2,T1); ts(e,3)
    def big(kind):
        seq=[(o,ks) for o in range(2) for ks in range(4)]
        def rd(i):
            o,ks=seq[i]
            for z,b in enumerate((C64,S64,N64)): e(f"ds_read_b128 {cr(3*(i%2)+z)}, v0 offset:{b+(4*o+ks)*1024}")
        rd(0)
        for i,(o,ks) in enumerate(seq):
            c,s_,n=[cr(3*(i%2)+z) for z in range(3)]
            if kind==2:
                dr,di=pk(PA,ks//2,0,ks%2),pk(PA,ks//2,1,ks%2)
                mf(ac(A2,o,0),c,dr,ks==0)
                if i+1<8: rd(i+1)
                mf(ac(A2,o,1),c,di,ks==0); mf(ac(A2,o,0),s_,di,False); mf(ac(A2,o,1),n,dr,False)
            else:
                dr,di=pk(PB,ks//2,0,ks%2),pk(PB,ks//2,1,ks%2)
                mf(ac(A1,o,0),dr,c,ks==0)
                if i+1<8: rd(i+1)
                mf(ac(A1,o,1),di,c,ks==0); mf(ac(A1,o,0),di,n,False); mf(ac(A1,o,1),dr,s_,False)
    big(2); ts(e,4)
    for i in range(16):
        mt,rp=i//8,i%8
        ar=A2+32*mt+2*rp; ai=ar+16; wr=WR+16*mt+rp; wi=wr+8; tt=A1+8*(i%2)
        e(f"v_lshlrev_b32 v{tt+4}, 16, v{wr}\nv_and_b32 v{tt+5}, 0xffff0000, v{wr}\nv_lshlrev_b32 v{tt+6}, 16, v{wi}\nv_and_b32 v{tt+7}, 0xffff0000, v{wi}")
        for u in range(2): e(f"v_mul_f32 v{tt+u}, v{ar+u}, v{tt+4+u}\nv_mul_f32 v{tt+2+u}, v{ai+u}, v{tt+4+u}")
        for u in range(2): e(f"v_fma_f32 v{tt+u}, -v{ai+u}, v{tt+6+u}, v{tt+u}\nv_fma_f32 v{tt+2+u}, v{ar+u}, v{tt+6+u}, v{tt+2+u}")
        e(f"v_cvt_pk_bf16_f32 v{PB+16*mt+rp}, v{tt}, v{tt+1}\nv_cvt_pk_bf16_f32 v{PB+16*mt+8+rp}, v{tt+2}, v{tt+3}")
    GR=WR
    for q in range(4):
        if q: e(f"v_xor_b32 v7, {16*q}, v4")
        for T in range(2): e(f"ds_read_b128 v[{GR+16*T+4*q}:{GR+16*T+4*q+3}], v{7 if q else 4} offset:{T*4096}")
    ts(e,5); big(3); ts(e,6)
    twid(A1,PA,A2,T2); ts(e,7)
    ld32()
    for T in range(2):
        for t in range(2):
            mf(ac(A2,T,0),cr(t),pk(PA,T,0,t),t==0); mf(ac(A2,T,1),cr(t),pk(PA,T,1,t),t==0)
            mf(ac(A2,T,0),cr(4+t),pk(PA,T,1,t),False); mf(ac(A2,T,1),cr(2+t),pk(PA,T,0,t),False)
    for T in range(2):
        for ri in range(2):
            for q in range(2):
                a=A2+32*T+16*ri+8*q; P=PB+16*T+8*ri+4*q; g=GR+16*T+8*q
                for p in range(8): e(f"v_mul_f32 v{a+p}, v{a+p}, v{g+p}")
                for p in range(4): e(f"v_cvt_pk_bf16_f32 v{P+p}, v{a+2*p}, v{a+2*p+1}")
                if ri==0: e(f"buffer_store_dwordx4 v[{P}:{P+3}], v5, s[24:27], s37 offen offset:{T*2048+q*1024} sc1")
                else:     e(f"buffer_store_dwordx4 v[{P}:{P+3}], v6, s[24:27], s38 offen offset:{T*2048+q*1024} sc1")
    ts(e,8)
    e(f"v_cmp_eq_u32 vcc, 0, v1\nv_mov_b32 v9, {hex(OOB)}\nv_cndmask_b32 v8, v9, v1, vcc\ns_lshl_b32 s41, s29, 3\ns_add_u32 s41, s41, {ZF}")
    e("s_waitcnt vmcnt(0)\ns_barrier\ns_cmp_lg_u32 s28, 0\ns_cbranch_scc1 F_NOFLAG")
    e(f"buffer_store_dwordx2 v[{NV}:{NV+1}], v8, s[24:27], s41 offen sc1")
    e.label("F_NOFLAG")
    ts.end(e,9); e("s_endpgm")

def helper(e,opt):
    e("s_sub_u32 s30, s54, 27\ns_lshl_b32 s30, s30, 3\ns_add_u32 s30, s30, s28\nv_and_b32 v1, 63, v0")
    pcptr(e,16,"FTAB",""); e(f"s_mov_b32 s18, {576*1152}\ns_mov_b32 s19, 0x20000")
    e("s_lshl_b32 s31, s30, 6\nv_add_u32 v4, s31, v1\nv_lshlrev_b32 v5, 7, v4")
    if opt.get('um',0):
        e("s_lshr_b32 s32, s3, 1\ns_mul_i32 s32, s32, 3\ns_add_u32 s33, s32, 2\ns_lshr_b32 s32, s32, 2\ns_lshr_b32 s33, s33, 2\ns_sub_u32 s33, s33, s32\ns_mul_i32 s32, s32, 3\ns_mul_i32 s33, s33, 3\ns_add_u32 s33, s33, 3")
        for z in range(2):
            e(f"v_add_u32 v6, {2560*z}, v4\nv_mul_u32_u24 v7, 7282, v6\nv_lshrrev_b32 v7, 16, v7\nv_mul_u32_u24 v7, 9, v7\nv_sub_u32 v7, v6, v7\nv_subrev_u32 v7, s32, v7\nv_cmp_gt_u32 vcc, s33, v7")
            e(f"v_lshlrev_b32 v6, 7, v6\nv_add_u32 v6, {opt.get('hc0',1)*64*1152}, v6\nv_mov_b32 v7, {hex(OOB)}\nv_cndmask_b32 v6, v7, v6, vcc\nbuffer_load_dword v{16+z}, v6, s[16:19], 0 offen")
        return
    e(f"s_mov_b32 s35, {opt.get('hc0',1)*64*1152}\nbuffer_load_dword v16, v5, s[16:19], s35 offen")
    e(f"v_add_u32 v5, {2560*128+opt.get('hc0',1)*64*1152}, v5\nbuffer_load_dword v17, v5, s[16:19], 0 offen")
def helper2(e,opt):
    srd(e,16,96,4608*1152)
    e(f"s_mul_i32 s35, s33, {1152*1152}")
    for z in range(5):
        e(f"v_add_u32 v5, {z*2560}, v4\nv_min_u32 v5, 10367, v5\nv_lshlrev_b32 v5, 7, v5\nbuffer_load_dword v{48+z}, v5, s[16:19], s35 offen")
    pcptr(e,16,"GTR",""); e(f"s_mov_b32 s18, {576*1152}\ns_mul_i32 s35, s33, {144*1152}")
    e("v_min_u32 v5, 1295, v4\nv_lshlrev_b32 v5, 7, v5\nbuffer_load_dword v56, v5, s[16:19], s35 offen")

def helper3(e,opt):
    e("s_sub_u32 s52, s54, 27\ns_lshl_b32 s52, s52, 3\ns_add_u32 s52, s52, s28\ns_lshl_b32 s52, s52, 6\nv_and_b32 v20, 63, v1\nv_add_u32 v20, s52, v20")
    d=64
    if opt.get('h3',0)&2==0:
        srd(e,48,6,576*9216)
        e("s_lshr_b32 s52, s3, 1\ns_mul_i32 s52, s52, 2304\ns_add_u32 s52, s52, 256")
        for z in range(2):
            e(f"v_add_u32 v21, {z*2560}, v20\nv_mul_u32_u24 v22, 43691, v21\nv_lshrrev_b32 v22, 18, v22\nv_mul_u32_u24 v23, 6, v22\nv_sub_u32 v23, v21, v23\nv_mul_u32_u24 v23, 384, v23\nv_mul_u32_u24 v22, 9216, v22\nv_add_u32 v22, v22, v23")
            e(f"buffer_load_dword v{d}, v22, s[48:51], s52 offen"); d+=1
    srd(e,48,96,4608*1152)
    e(f"s_lshr_b32 s52, s3, 1\ns_mul_i32 s52, s52, {1152*1152}")
    for z in range(5):
        e(f"v_add_u32 v21, {z*2560}, v20\nv_lshlrev_b32 v22, 7, v21")
        if z==4: e(f"v_cmp_gt_u32 vcc, 10368, v21\nv_mov_b32 v23, {hex(OOB)}\nv_cndmask_b32 v22, v23, v22, vcc")
        e(f"buffer_load_dword v{d}, v22, s[48:51], s52 offen"); d+=1
    pcptr(e,48,"GTR",""); e(f"s_mov_b32 s50, {576*1152}\ns_lshr_b32 s52, s3, 1\ns_mul_i32 s52, s52, {144*1152}")
    e(f"v_cmp_gt_u32 vcc, 1296, v20\nv_lshlrev_b32 v22, 7, v20\nv_cndmask_b32 v22, v23, v22, vcc\nbuffer_load_dword v{d}, v22, s[48:51], s52 offen")

def mega(name,opt):
    e=Em()
    e.raw(f".globl {name}\n.p2align 8\n.type {name},@function\n{name}:")
    e("s_cmp_ge_u32 s2, 256\ns_cbranch_scc1 M_END")
    ts=TS(opt.get('ts',0),0); opt['TS']=ts; ts.start(e)
    e("s_load_dwordx2 s[4:5], s[0:1], 0\ns_load_dwordx2 s[6:7], s[0:1], 32\ns_load_dwordx2 s[8:9], s[0:1], 72\ns_load_dwordx2 s[10:11], s[0:1], 48\ns_load_dwordx2 s[96:97], s[0:1], 40\ns_load_dwordx2 s[98:99], s[0:1], 56\ns_load_dwordx2 s[100:101], s[0:1], 64")
    e("v_lshrrev_b32 v1, 6, v0\nv_readfirstlane_b32 s28, v1")
    e("s_and_b32 s3, s2, 7\ns_lshr_b32 s54, s2, 3")
    if opt.get('jm',-1)>=0:
        e(f"s_and_b32 s41, s54, 3\ns_lshr_b32 s42, s54, 2\ns_mul_i32 s43, s42, 3\ns_add_u32 s43, s43, s41\ns_cmp_gt_u32 s41, {opt['jm']}\ns_cselect_b32 s44, 1, 0\ns_sub_u32 s43, s43, s44\ns_add_u32 s42, s42, 24\ns_cmp_eq_u32 s41, {opt['jm']}\ns_cselect_b32 s54, s42, s43")
    LZ=opt.get('lz',1)
    if not LZ: e("s_waitcnt lgkmcnt(0)")
    e("s_or_b32 s41, s2, s28\ns_cmp_lg_u32 s41, 0\ns_cbranch_scc1 M_NONONCE")
    e.raw("s_memrealtime s[56:57]\n s_waitcnt lgkmcnt(0)\n s_or_b32 s56, s56, 1\n v_mov_b32 v2, s56\n v_mov_b32 v3, s57\n v_mov_b32 v4, 0\n global_store_dwordx2 v4, v[2:3], s[100:101] sc1\n s_nop 1\nM_NONONCE:")
    def s24(e): srd(e,24,8,WS_SZ,opt.get('wso',0)<<20)
    def pre(e,H):
        srd(e,16,4,2048*1152)
        if H: srd(e,20,6,576*9216)
        srd(e,12,10,1152); s24(e)
    opt['PRE']=pre if LZ else None
    if not LZ: s24(e)
    e("s_cmp_ge_u32 s54, 27\ns_cbranch_scc1 M_FFT")
    ef=e.fork()
    if not LZ: srd(e,16,4,2048*1152); srd(e,12,10,1152)
    e("s_cmp_ge_u32 s54, 24\ns_cbranch_scc1 M_U")
    eu=e.fork()
    if not LZ: srd(e,20,6,576*9216)
    e("s_and_b32 s29, s3, 1\ns_lshl_b32 s29, s29, 2\ns_and_b32 s42, s54, 3\ns_add_u32 s29, s29, s42")
    e("s_lshr_b32 s30, s3, 1\ns_mul_i32 s30, s30, 6\ns_lshr_b32 s42, s54, 2\ns_add_u32 s30, s30, s42")
    L=g1(e,'h',opt)
    eu.label("M_U")
    pcptr(eu,20,"FTAB","")
    eu(f"s_mov_b32 s22, {576*1152}\ns_mov_b32 s23, 0x20000\ns_sub_u32 s30, s54, 24")
    eu("s_mov_b32 s55, s30")
    if opt.get('um',0): eu("s_lshr_b32 s42, s3, 1\ns_mul_i32 s42, s42, 3\ns_add_u32 s42, s42, s30\ns_lshr_b32 s30, s42, 2\ns_and_b32 s42, s42, 3\ns_and_b32 s29, s3, 1\ns_lshl_b32 s29, s29, 2\ns_add_u32 s29, s29, s42")
    else: eu("s_and_b32 s29, s3, 1\ns_lshl_b32 s29, s29, 2\ns_lshr_b32 s42, s3, 1\ns_add_u32 s29, s29, s42")
    L+=g1(eu,'u',opt)
    ef.label("M_FFT")
    if LZ: s24(ef)
    ef("s_mul_i32 s29, s3, 5\ns_add_u32 s29, s29, s54\ns_sub_u32 s29, s29, 27")
    if opt.get('hp',1):
        helper(ef,opt)
        if opt.get('h2',0)==1: helper2(ef,opt)
    ef("s_cmp_ge_u32 s29, 37\ns_cbranch_scc1 M_IDLE")
    ei=ef.fork()
    fft(ef,opt)
    ei.label("M_IDLE"); ei("v_and_b32 v1, 63, v0")
    if opt.get('h3',0): helper3(ei,opt)
    ef.raw(ei.text())
    ef.label("M_END"); ef.raw("s_waitcnt vmcnt(0)\ns_endpgm")
    return '\n'.join(x.text() for x in L+[ef])
```

```python
from common import *
def big_tables():
    L=[]
    for k in range(576): L.append(f'.set CT{k}, {bf16bits(np.cos(2*np.pi*k/576) if k not in (144,432) else 0.0)}')
    L.append(r'''.altmacro
.macro EC i
.short CT\i
.endm
.p2align 8
FTAB:
.set dd,0
.rept 576
.set ix,0
.rept 289
EC %ix
.set ix,(ix+dd)%576
.endr
.set ix,(dd+144)%576
.rept 287
EC %ix
.set ix,(ix+dd)%576
.endr
.set dd,dd+1
.endr''')
    L.append(f'.set HALFP, {bf16bits(0.5)}\n.set HALFN, {bf16bits(-0.5)}')
    L.append(r'''.macro EG d c
.if \c == 0
.short HALFP
.elseif \c == 288
.if (\d & 1)
.short HALFN
.else
.short HALFP
.endif
.elseif \c < 288
EC %((\d*\c)%576)
.else
EC %((\d*(\c-288)+144)%576)
.endif
.endm
.p2align 8
GTAB:
.set dt,0
.rept 18
.set kk,0
.rept 36
.set ll,0
.rept 64
.set dv,32*dt+16*((ll>>2)&1)+4*((ll>>3)&3)+(ll&3)
.set cv,16*kk+8*(ll>>5)
.rept 8
EG %dv, %cv
.set cv,cv+1
.endr
.set ll,ll+1
.endr
.set kk,kk+1
.endr
.set dt,dt+1
.endr
.noaltmacro''')
    return '\n'.join(L)
def perm8(t,h,j): return 16*t+8*(j//4)+4*h+j%4
def cperm(r,h): return 8*(r//4)+4*h+r%4
def fft_tables():
    W=[]
    def frag(fn):
        for l in range(64):
            v=[bf16bits(fn(l%32,l//32,j)) for j in range(8)]
            for p in range(4): W.append(v[2*p]|(v[2*p+1]<<16))
    def cs(n,idx,kind):
        idx%=n; a=2*np.pi*idx/n
        c=np.cos(a); s=np.sin(a)
        if abs(c)<1e-12:c=0.0
        if abs(s)<1e-12:s=0.0
        return {'c':c,'s':s,'n':-s}[kind]+0.0
    for kind in 'csn':
        for t in range(2): frag(lambda n,h,j: cs(32,n*perm8(t,h,j),kind))
    for kind in 'csn':
        for mt in range(2):
            for ks in range(4): frag(lambda n,h,j: cs(64,(32*mt+n)*(32*(ks//2)+perm8(ks%2,h,j)),kind))
    sc=2.0/(576*2048)
    for which in range(2):
        for tile in range(2):
            for rp in range(8):
                for l in range(64):
                    for r in (2*rp,2*rp+1):
                        if which==0: k1=l%32; s2=32*tile+cperm(r,l//32); a=-2*np.pi*k1*s2/2048; m=1.0
                        else: s2=32*tile+l%32; k1=cperm(r,l//32); a=2*np.pi*k1*s2/2048; m=sc
                        W.append(f32bits(m*np.cos(a))); W.append(f32bits(m*np.sin(a)))
    assert len(W)==62*256
    L=['.p2align 8','FFTTAB:']
    for i in range(0,len(W),8): L.append('.long '+','.join(hex(x) for x in W[i:i+8]))
    return '\n'.join(L)
def big_tables_m():
    t=big_tables(); t=t[:t.index('.macro EG d c')]
    t+=r'''.p2align 8
GTR:
.rept 576
.short HALFP
.endr
.set cc,1
.rept 287
.set ix,0
.rept 576
EC %ix
.set ix,(ix+cc)%576
.endr
.set cc,cc+1
.endr
.rept 288
.short HALFP
.short HALFN
.endr
.set cc,1
.rept 287
.set ix,144
.rept 576
EC %ix
.set ix,(ix+cc)%576
.endr
.set cc,cc+1
.endr
.noaltmacro'''
    return t

def big_tables_o():
    t=big_tables(); t=t[:t.index('.macro EG d c')]
    t+=r'''.macro EGK
.if kk==0
.short HALFP
.elseif kk<288
.set ix,(kk*col)%576
EC %ix
.elseif kk==288
.if col&1
.short HALFN
.else
.short HALFP
.endif
.else
.set ix,(144+(kk-288)*col)%576
EC %ix
.endif
.endm
.p2align 8
GTR:
.set bd,0
.rept 6
.set ks,0
.rept 18
.set fr,0
.rept 6
.set ln,0
.rept 64
.set col,192*(bd%3)+48*(bd/3)+96*(fr/3)+16*(fr%3)+(ln&15)
.set kk,32*ks+16*(ln>>5)+4*((ln>>4)&1)
.rept 4
EGK
.set kk,kk+1
.endr
.set kk,kk+4
.rept 4
EGK
.set kk,kk+1
.endr
.set ln,ln+1
.endr
.set fr,fr+1
.endr
.set ks,ks+1
.endr
.set bd,bd+1
.endr
.noaltmacro'''
    return t
```
